```python
import torch

def _softmax(x, axis=-1):
    return torch.softmax(x, dim=axis)

def _gelu(x):
    return torch.nn.functional.gelu(x, approximate='tanh')

def _silu(x):
    return torch.nn.functional.silu(x)

def _sigmoid(x):
    return torch.sigmoid(x)

def _layernorm(x, axis=-1, eps=1e-05):
    m = x.mean(dim=axis, keepdim=True)
    v = x.var(dim=axis, keepdim=True, unbiased=False)
    return (x - m) / torch.sqrt(v + eps)

def _scatter_add(tgt, idx, src, axis=0):
    return tgt.clone().index_add_(axis, idx, src)

def _segment_sum(src, seg, n):
    out = torch.zeros((n,) + src.shape[1:], dtype=src.dtype)
    return out.index_add_(0, seg, src)

def _pad(x, pw):
    flat = tuple((v for pair in reversed(pw) for v in pair))
    return torch.nn.functional.pad(x, flat)
kernel_name = 'parallel_sum__memory_aug_recurrent_mem_tr__glu_gated_geglu__prompt'

def setup_inputs():

    _w = lambda a: (lambda t: t.to(torch.bfloat16) if t.is_floating_point() else t)(torch.as_tensor(a))

    def _A_setup():
        B, S, Dm = (1, 2048, 512)
        H, Dh = (32, 128)
        M, seg = (8, 32)
        seg = min(seg, S)
        S = S // seg * seg
        return {'x': _w((lambda *s: torch.randn(*s, dtype=torch.bfloat16) * 0.05)(B, S, Dm)), 'mem0': _w((lambda *s: torch.randn(*s, dtype=torch.bfloat16) * 0.2)(B, M, Dm)), 'Wq': _w((lambda *s: torch.randn(*s, dtype=torch.bfloat16) * 1.6)(Dm, H, Dh) * Dm ** (-0.5)), 'Wk': _w((lambda *s: torch.randn(*s, dtype=torch.bfloat16) * 1.6)(Dm, H, Dh) * Dm ** (-0.5)), 'Wv': _w((lambda *s: torch.randn(*s, dtype=torch.bfloat16) * 0.2)(Dm, H, Dh) * Dm ** (-0.5)), 'Wo': _w((lambda *s: torch.randn(*s, dtype=torch.bfloat16) * 0.2)(H, Dh, Dm) * (H * Dh) ** (-0.5)), 'seg_len': seg}
    _A_in = _A_setup()

    def _B_setup():
        B, S, Dm, Df = (1, 2048, 512, 1792)
        return {'x': _w((lambda *s: torch.randn(*s, dtype=torch.bfloat16) * 0.05)(B, S, Dm)), 'w_gate': _w((lambda *s: torch.randn(*s, dtype=torch.bfloat16) * 0.4)(Dm, Df) * Dm ** (-0.5)), 'w_up': _w((lambda *s: torch.randn(*s, dtype=torch.bfloat16) * 0.4)(Dm, Df) * Dm ** (-0.5)), 'w_down': _w((lambda *s: torch.randn(*s, dtype=torch.bfloat16) * 0.4)(Df, Dm) * Df ** (-0.5))}
    _B_in = _B_setup()
    return {'A_x': _A_in['x'], 'A_mem0': _A_in['mem0'], 'A_Wq': _A_in['Wq'], 'A_Wk': _A_in['Wk'], 'A_Wv': _A_in['Wv'], 'A_Wo': _A_in['Wo'], 'A_seg_len': _A_in['seg_len'], 'B_x': _B_in['x'], 'B_w_gate': _B_in['w_gate'], 'B_w_up': _B_in['w_up'], 'B_w_down': _B_in['w_down']}

def reference(A_x, A_mem0, A_Wq, A_Wk, A_Wv, A_Wo, A_seg_len, B_x, B_w_gate, B_w_up, B_w_down):

    def _A_ref(x, mem0, Wq, Wk, Wv, Wo, seg_len):
        B, S, Dm = x.shape
        H, Dh = (Wq.shape[1], Wq.shape[2])
        M = mem0.shape[1]
        scale = Dh ** (-0.5)
        n_seg = S // seg_len
        L = M + seg_len
        idx = torch.arange(L)
        mask = (idx[:, None] < M) | (idx[:, None] >= idx[None, :])
        mem = mem0
        outs = []
        for s in range(n_seg):
            xs = x[:, s * seg_len:(s + 1) * seg_len, :].clone()
            h = torch.concatenate([mem, xs], axis=1)
            q = torch.einsum('btd,dhe->bhte', h, Wq)
            k = torch.einsum('btd,dhe->bhte', h, Wk)
            v = torch.einsum('btd,dhe->bhte', h, Wv)
            scores = torch.einsum('bhqe,bhke->bhqk', q, k) * scale
            scores = torch.where(mask[None, None], scores, -1000000000.0)
            p = _softmax(scores, axis=-1)
            o = torch.einsum('bhqk,bhke->bhqe', p, v)
            o = torch.einsum('bhte,hed->btd', o, Wo)
            mem = o[:, :M, :].clone()
            outs.append(o[:, M:, :])
        return torch.concatenate(outs, axis=1)

    def _B_ref(x, w_gate, w_up, w_down):
        g = torch.einsum('bsd,df->bsf', x, w_gate)
        u = torch.einsum('bsd,df->bsf', x, w_up)
        h = _gelu(g) * u
        return torch.einsum('bsf,fd->bsd', h, w_down)
    x = A_x
    xn = _layernorm(x, axis=-1)
    return x + _A_ref(xn, A_mem0, A_Wq, A_Wk, A_Wv, A_Wo, A_seg_len) + _B_ref(xn, B_w_gate, B_w_up, B_w_down)
```

```python
import re

TRANS = ('v_exp_f32','v_log_f32','v_rcp_f32','v_rsq_f32','v_sqrt_f32','v_sin_f32','v_cos_f32','v_rcp_iflag_f32')
NO_DST_S = ('s_cmp','s_waitcnt','s_barrier','s_nop','s_branch','s_cbranch','s_endpgm','s_sleep','s_setprio','s_bitcmp','s_setreg')

def mfma_passes(m):
    if m.startswith('v_smfmac_f32_16x16x64'): return 4
    if m.startswith('v_smfmac_f32_32x32x32'): return 8
    if '16x16x32' in m or '16x16x16' in m: return 4
    if '32x32x16' in m or '32x32x8' in m: return 8
    raise ValueError(m)

_reg_re = re.compile(r'^(-?|abs\()?([vas])(\d+|\[(\d+):(\d+)\])\)?$')
def parse_reg(op):
    op = op.strip()
    if op in ('vcc',): return [('s',106),('s',107)]
    if op == 'vcc_lo': return [('s',106)]
    if op == 'vcc_hi': return [('s',107)]
    if op == 'exec': return [('s',126),('s',127)]
    if op == 'exec_lo': return [('s',126)]
    if op == 'exec_hi': return [('s',127)]
    if op == 'm0': return [('s',124)]
    op2 = op
    if op2.startswith('-'): op2 = op2[1:]
    if op2.startswith('|') and op2.endswith('|'): op2 = op2[1:-1]
    if op2.startswith('abs(') and op2.endswith(')'): op2 = op2[4:-1]
    m = re.match(r'^([vas])(\d+)$', op2)
    if m: return [(m.group(1), int(m.group(2)))]
    m = re.match(r'^([vas])\[(\d+):(\d+)\]$', op2)
    if m: return [(m.group(1), i) for i in range(int(m.group(2)), int(m.group(3))+1)]
    return []

class Ins:
    __slots__=('text','mn','ops','kind','wr','rd','srcc','srcab','passes','dpp','lds_dma','wide_store','sdata','states')
    def __init__(self, text):
        self.text = text
        t = text.split(';')[0].strip()
        parts = t.split(None,1)
        mn = parts[0]; self.mn = mn
        rest = parts[1] if len(parts)>1 else ''
        raw = [o.strip() for o in rest.split(',')] if rest else []
        ops=[]; mods=[]
        for i,o in enumerate(raw):
            toks=o.split()
            if not toks: continue
            ops.append(toks[0]); mods+=toks[1:]
        self.ops=ops
        for m_ in mods:
            if m_.startswith('offset:'):
                o_=int(m_[7:],0)
                if mn.startswith('buffer_'): assert 0<=o_<=4095, text
                elif mn.startswith('ds_'): assert 0<=o_<=65535, text
                elif mn.startswith('global_'): assert -4096<=o_<=4095, text
        self.wr=[]; self.rd=[]; self.srcc=[]; self.srcab=[]; self.passes=0
        self.dpp = mn.endswith('_dpp') or any(m.startswith(('row_','quad_perm','wave_')) for m in mods)
        self.lds_dma=False; self.wide_store=False; self.sdata=[]
        self.states=1
        R=[parse_reg(o) for o in ops]
        def allr(lst):
            out=[]
            for x in lst: out+=x
            return out
        if mn.startswith('v_mfma') or mn.startswith('v_smfmac'):
            self.kind='mfma'; self.passes=mfma_passes(mn)
            self.wr=R[0]
            if mn.startswith('v_smfmac'):
                self.srcc=R[0]; self.srcab=R[1]+R[2]+R[3]
            else:
                self.srcc=R[3]; self.srcab=R[1]+R[2]
            self.rd=self.srcc+self.srcab
        elif mn.startswith('v_'):
            self.kind='valu'
            base=mn.replace('_e32','').replace('_e64','').replace('_dpp','').replace('_sdwa','')
            if base.startswith('v_permlane') and 'swap' in base:
                self.wr=R[0]+R[1]; self.rd=R[0]+R[1]
            elif base in ('v_add_co_u32','v_sub_co_u32','v_subrev_co_u32','v_addc_co_u32','v_subb_co_u32','v_mad_u64_u32','v_div_scale_f32'):
                self.wr=R[0]+R[1]; self.rd=allr(R[2:])
            elif base in ('v_fmac_f32','v_pk_fmac_f16','v_dot2c_f32_bf16','v_writelane_b32'):
                self.wr=R[0]; self.rd=allr(R)
            elif base=='v_nop':
                pass
            else:
                self.wr=R[0]; self.rd=allr(R[1:])
                if self.dpp: self.rd=self.rd+R[0]
            if base=='v_cndmask_b32' and len(ops)==3: self.rd+=parse_reg('vcc')
        elif mn.startswith('s_'):
            self.kind='salu'
            if mn.startswith('s_load') or mn.startswith('s_buffer_load') or mn in('s_memtime','s_memrealtime'):
                self.kind='smem'; self.wr=R[0]; self.rd=allr(R[1:])
            elif mn.startswith(NO_DST_S):
                self.rd=allr(R)
                if mn=='s_nop': self.states=int(ops[0],0)+1
            elif 'saveexec' in mn:
                self.wr=R[0]+parse_reg('exec'); self.rd=allr(R[1:])+parse_reg('exec')
            else:
                self.wr=R[0]; self.rd=allr(R[1:])
        elif mn.startswith('ds_'):
            self.kind='ds'
            if mn.startswith(('ds_read','ds_bpermute','ds_permute','ds_swizzle')) or '_rtn' in mn:
                self.wr=R[0]; self.rd=allr(R[1:])
            else:
                self.rd=allr(R)
        elif mn.startswith(('buffer_','global_')):
            self.kind='vmem'
            if 'lds' in mods or '_lds_' in mn:
                self.lds_dma=True; self.rd=allr(R)+parse_reg('m0')
            elif '_load_' in mn:
                self.wr=R[0]; self.rd=allr(R[1:])
            elif '_store_' in mn:
                self.rd=allr(R)
                if mn.endswith(('x3','x4')):
                    self.wide_store=True
                    self.sdata = R[0] if mn.startswith('buffer_') else R[1]
            elif '_atomic_' in mn:
                if 'sc0' in mods:
                    if mn.startswith('buffer_'): self.wr=R[0]; self.rd=allr(R)
                    else: self.wr=R[0]; self.rd=allr(R[1:])
                else: self.rd=allr(R)
            else:
                self.rd=allr(R)
        else:
            raise ValueError('unknown instruction: '+text)

def need(prod, cons):
    n=0
    pw=set(prod.wr)
    if prod.kind=='valu':
        vw={r for r in pw if r[0] in 'va'}
        sw={r for r in pw if r[0]=='s'}
        if vw:
            if cons.kind=='mfma' and vw & set(cons.rd): n=max(n,2)
            if cons.kind=='valu':
                cr=set(cons.rd)
                if cons.mn.startswith(('v_readfirstlane','v_readlane')) and vw & cr: n=max(n,1)
                if cons.mn.startswith('v_permlane') and vw & cr: n=max(n,2)
                if cons.dpp and vw & cr: n=max(n,2)
                if prod.mn.replace('_e32','').replace('_e64','') in TRANS and vw & cr: n=max(n,1)
        if sw:
            cr=set(cons.rd)
            if cons.kind=='vmem' and sw & cr: n=max(n,5)
            if cons.kind=='valu' and sw & cr:
                n=max(n,4 if cons.mn.startswith(('v_readlane','v_writelane')) else 2)
            if cons.kind=='mfma' and (('s',126) in sw): n=max(n,4)
            if cons.kind in('salu','smem') and sw & cr: n=max(n,1)
    elif prod.kind=='mfma':
        p=prod.passes
        if cons.kind=='mfma':
            if pw & set(cons.srcab): n=max(n,p+4)
            if pw & set(cons.srcc):
                if list(prod.wr)==list(cons.srcc) and prod.passes==cons.passes: n=max(n,0 if p>=4 else 2)
                else: n=max(n,p+2)
            elif pw & set(cons.wr): n=max(n,p+2)
        else:
            if pw & (set(cons.rd)|set(cons.wr)): n=max(n,p+4)
            if cons.kind=='valu' and set(prod.srcc) & set(cons.wr): n=max(n,p-1)
            if cons.kind in('ds','vmem') and set(prod.srcc) & set(cons.wr): n=max(n,p-1)
    elif prod.kind=='salu':
        if ('s',124) in pw and cons.lds_dma: n=max(n,1)
    if prod.wide_store and set(prod.sdata) & set(cons.wr):
        n=max(n, 2)
    return n

MAXWIN=14
class Asm:
    def __init__(self):
        self.out=[]
        self.hist=[]
        self.nlabel=0
        self.ninst=0
        self.tnext=0; self.tmfma=0
        self.lq=[]
        self.vq=[]
        self.smem=set()
        self.auto=True
    def raw(self, s): self.out.append(s)
    def comment(self, s): self.out.append('    ; '+s)
    def __call__(self, text, tag=None):
        for line in text.strip().split('\n'):
            line=line.strip()
            if not line or line.startswith(';'):
                continue
            self._emit(line, tag)
    def _need_wait(self, q, regs):
        for i in range(len(q)-1,-1,-1):
            if q[i][0] & regs: return len(q)-1-i
        return None
    def _apply_wait(self, text):
        m=re.search(r'vmcnt\((\d+)\)',text)
        if m:
            n=int(m.group(1))
            if len(self.vq)>n: self.vq=self.vq[len(self.vq)-n:] if n>0 else []
        m=re.search(r'lgkmcnt\((\d+)\)',text)
        if m:
            n=int(m.group(1))
            if n==0: self.smem=set()
            if len(self.lq)>n and not self.smem: self.lq=self.lq[len(self.lq)-n:] if n>0 else []
    def wait_ds_writes(self):
        idx=[i for i,e in enumerate(self.lq) if e[1]]
        if idx:
            n=len(self.lq)-1-idx[-1]
            if self.smem: n=0
            self._emit('s_waitcnt lgkmcnt(%d)'%min(n,15))
    def wait_vm_tag(self, tag):
        idx=[i for i,e in enumerate(self.vq) if e[1]==tag]
        if idx:
            n=len(self.vq)-1-idx[-1]
            self._emit('s_waitcnt vmcnt(%d)'%min(n,63))
    def reset_queues(self):
        self.lq=[]; self.vq=[]; self.smem=set()
    def _emit(self, text, tag=None):
        ins=Ins(text)
        if ins.mn=='s_waitcnt':
            self._apply_wait(text)
        elif self.auto:
            regs=set(ins.rd)|set(ins.wr)
            w=[]
            nv=self._need_wait(self.vq, regs)
            if nv is not None: w.append('vmcnt(%d)'%min(nv,63))
            if self.smem & regs: w.append('lgkmcnt(0)')
            else:
                nl=self._need_wait(self.lq, regs)
                if nl is not None: w.append('lgkmcnt(%d)'%(0 if self.smem else min(nl,15)))
            if w: self._emit('s_waitcnt '+' '.join(w))
        if ins.kind=='ds': self.lq.append((set(ins.wr), not ins.wr))
        elif ins.kind=='vmem' and not ins.mn.startswith(('buffer_wbl2','buffer_inv')): self.vq.append((set(ins.wr), tag))
        elif ins.kind=='smem': self.smem|=set(ins.wr)
        def t_issue(extra):
            t=self.tnext+4*extra
            if ins.kind=='mfma': t=max(t,self.tmfma)
            return t
        pad=0
        for p,tp in reversed(self.hist):
            nd=need(p,ins)
            if nd:
                while t_issue(pad)-tp < 4*(nd+1): pad+=1
            if self.tnext-tp > 4*MAXWIN+8: break
        while pad>0:
            k=min(pad,16)
            self.out.append('    s_nop %d'%(k-1)); pad-=k; self.ninst+=1; self.tnext+=4*k
        t=t_issue(0)
        self.hist.append((ins,t)); self.out.append('    '+text); self.ninst+=1
        self.tnext=t+4*ins.states
        if ins.kind=='mfma': self.tmfma=t+4*ins.passes
        if len(self.hist)>60: self.hist=self.hist[-40:]
    def fence(self):
        pad=0
        for p,tp in reversed(self.hist):
            w=0
            if p.kind=='mfma': w=p.passes+4
            elif p.kind=='valu': w=5 if any(r[0]=='s' for r in p.wr) else 2
            elif p.kind=='salu' and ('s',124) in p.wr: w=1
            if p.wide_store: w=max(w,2)
            if w:
                while self.tnext+4*pad-tp < 4*(w+1): pad+=1
        while pad>0:
            k=min(pad,16)
            self.out.append('    s_nop %d'%(k-1)); pad-=k; self.ninst+=1; self.tnext+=4*k
        self.hist=[]; self.tmfma=0
    def label(self, name, fence=True):
        if fence: self.fence()
        self.out.append(name+':')
    def branch(self, text, fence=True):
        if fence: self.fence()
        self._emit(text)
    def newlabel(self, base='L'):
        self.nlabel+=1
        return '%s_%d'%(base,self.nlabel)
    def text(self): return '\n'.join(self.out)+'\n'

def v(i,n=1): return 'v%d'%i if n==1 else 'v[%d:%d]'%(i,i+n-1)
def a(i,n=1): return 'a%d'%i if n==1 else 'a[%d:%d]'%(i,i+n-1)
def s(i,n=1): return 's%d'%i if n==1 else 's[%d:%d]'%(i,i+n-1)
```

```python
from asmlib import *
from layout import *

L_B0=0x20000; L_B1=0x22000; L_QS=0x24000; L_OE=0x24000; L_KS=0x24800; L_SX=0x25800; L_SM=0x27400; L_Z=0x27800; L_MISC=0x27A00
CHAIN_LDS=0x27B00
MEMF=0; QACC=32; KACC=40; VACC=48; BL=56; BH=60; KXF=64; KMF=72; VXF=76
IDX=84; L16=85; LW=86; LK=87; EXQ=88; TRL=89; OW=90; OR=91; PST=92; MST=93; T0=94; T1=95
BUF=96; WV=128; WO=192
S_W=3; S_H=4; S_STEP=5
SRD_WS=8; SRD_W=12; SRD_DBG=16
S_T=20
S_GATH=24; S_G2=25; S_MEMW=26; S_M1=27; S_M2=28; S_KVX=29; S_KVM=30; S_W2K=31
S_SEL=32; S_HI8=40; S_C=42; S_FAIL=44; S_RETRY=45
S_PW=72
S_CGE2=76
S_X1=84; S_X2=85; S_X3=86; S_XW=87; S_KSW=88; S_SMW=89; S_TRX=90
MAXRETRY=2000000
CFG=dict(ABS=False,NO_DMA=False,NO_EXPORT=False,NO_HOPS=False,M0=None,M1=None)
ABS=['q0','st','g1','g3','md1','md3']
def mark(A,name):
    if CFG.get('ABS') and name in ABS and CFG.get('_p',0)==0:
        i=ABS.index(name)
        regs=[(78,79),(80,81),(82,83),(96,97),(98,99),(100,101)][i]
        A(f's_memtime s[{regs[0]}:{regs[1]}]')
    if CFG['M0']==name: A('s_memtime s[78:79]')
    if CFG['M1']==name: A('s_memtime s[80:81]')
def mark_acc(A):
    if CFG['M0']:
        A('s_waitcnt lgkmcnt(0)\ns_sub_u32 s82, s80, s78\ns_add_u32 s94, s94, s82')

def srd(A, d, lo, size):
    A(f's_mov_b32 s{d}, s{lo}\ns_and_b32 s{d+1}, s{lo+1}, 0xffff\ns_mov_b32 s{d+2}, {size}\ns_mov_b32 s{d+3}, 0x20000')

def chain_setup(A):
    A(f'''
    v_and_b32 v1, 63, v0                 ; lane
    v_and_b32 v2, 15, v1                 ; lo
    v_lshrrev_b32 v3, 4, v1              ; g
    v_lshlrev_b32 v{L16}, 4, v1
    s_lshl_b32 s{S_T}, s{S_W}, 15
    v_add_u32 v{LW}, s{S_T}, v{L16}
    v_add_u32 v{LK}, {L_B0}, v{L16}
    v_mov_b32 v4, 0x4444
    v_mov_b32 v5, 0xeeee
    v_and_b32 v6, 1, v1
    v_cmp_eq_u32 vcc, 0, v6
    v_cndmask_b32 v{IDX}, v5, v4, vcc
    v_cmp_lt_u32 s[{S_HI8}:{S_HI8+1}], 7, v2
    v_lshlrev_b32 v4, 4, v2
    v_lshl_add_u32 v4, v3, 2, v4
    s_lshl_b32 s{S_T}, s{S_W}, 9
    s_add_u32 s{S_T}, s{S_T}, {L_QS}
    v_add_u32 v{EXQ}, s{S_T}, v4
    v_lshrrev_b32 v4, 2, v1
    v_lshlrev_b32 v4, 4, v4
    v_lshl_add_u32 v4, v6, 3, v4
    v_add_u32 v{TRL}, s{S_T}, v4
    v_and_b32 v4, 2, v1
    v_cmp_ne_u32 s[{S_CGE2}:{S_CGE2+1}], 0, v4
    v_and_b32 v7, 7, v2
    v_lshl_add_u32 v4, v3, 3, v7
    v_lshlrev_b32 v4, 4, v4
    v_lshrrev_b32 v5, 3, v2
    v_lshl_add_u32 v4, v5, 3, v4
    s_lshl_b32 s{S_T}, s{S_W}, 9
    s_add_u32 s{S_T}, s{S_T}, {L_OE}
    v_add_u32 v{OW}, s{S_T}, v4
    v_lshrrev_b32 v5, 1, v2
    v_lshl_add_u32 v4, v3, 3, v5
    v_lshlrev_b32 v4, 4, v4
    v_lshl_add_u32 v4, v6, 9, v4
    v_add_u32 v{OR}, {L_OE}, v4
    v_mov_b32 v4, 0
    v_mov_b32 v5, 0
    v_lshlrev_b32 v8, 3, v1
    v_add_u32 v8, {L_Z}, v8
    ds_write_b64 v8, v[4:5]
    s_lshl_b32 s{S_XW}, s{S_W}, 10
    s_add_u32 s{S_X1}, s{S_XW}, 1024
    s_and_b32 s{S_X1}, s{S_X1}, 4095
    s_add_u32 s{S_X2}, s{S_XW}, 2048
    s_and_b32 s{S_X2}, s{S_X2}, 4095
    s_add_u32 s{S_X3}, s{S_XW}, 3072
    s_and_b32 s{S_X3}, s{S_X3}, 4095
    s_add_u32 s{S_KSW}, s{S_XW}, {L_KS}
    s_lshl_b32 s{S_SMW}, s{S_W}, 2
    s_mov_b32 s{S_TRX}, {L_Z}
    v_lshrrev_b32 v4, 3, v2
    v_lshlrev_b32 v4, 13, v4
    v_lshrrev_b32 v8, 1, v3
    v_lshl_add_u32 v8, v8, 3, v7
    v_lshl_add_u32 v4, v8, 4, v4
    v_and_b32 v9, 1, v3
    v_lshl_add_u32 v4, v9, 3, v4
    s_lshl_b32 s{S_T}, s{S_W}, 16
    v_add_u32 v{PST}, s{S_T}, v4
    v_lshrrev_b32 v4, 2, v7              ; rho>>1
    v_lshlrev_b32 v4, 1, v4
    v_and_b32 v8, 1, v7
    v_or_b32 v4, v4, v8                  ; rho
    v_lshrrev_b32 v8, 1, v3
    v_lshl_add_u32 v4, v8, 2, v4         ; i
    v_bfe_u32 v8, v7, 1, 1               ; t
    v_lshl_add_u32 v4, v4, 1, v8
    v_lshlrev_b32 v4, 4, v4
    v_lshl_add_u32 v{MST}, v9, 3, v4
    v_lshrrev_b32 v4, 1, v7
    v_cmp_eq_u32 s[{S_SEL}:{S_SEL+1}], 0, v4
    v_cmp_eq_u32 s[{S_SEL+2}:{S_SEL+3}], 1, v4
    v_cmp_eq_u32 s[{S_SEL+4}:{S_SEL+5}], 2, v4
    v_cmp_eq_u32 s[{S_SEL+6}:{S_SEL+7}], 3, v4
    s_mov_b32 s{S_C}, 0x3e0293ee
    s_mov_b32 s{S_RETRY}, 0
    s_mov_b32 s{S_FAIL}, 0
    s_lshl_b32 s{S_T}, s{S_H}, 13
    s_add_u32 s{S_GATH}, s{S_T}, {P_OFF}
    s_add_u32 s{S_G2}, s{S_GATH}, 4096
    s_lshl_b32 s{S_T}, s{S_H}, 8
    s_add_u32 s{S_PW}, s{S_T}, {P_OFF}
    s_add_u32 s{S_PW+1}, s{S_PW}, 16384
    s_add_u32 s{S_PW+2}, s{S_PW}, 32768
    s_add_u32 s{S_PW+3}, s{S_PW}, 49152
    s_add_u32 s{S_MEMW}, s{S_T}, {M_OFF}
    s_mov_b32 s{S_M1}, {M_OFF}
    s_mov_b32 s{S_M2}, {M_OFF+4096}
    s_lshl_b32 s{S_W2K}, s{S_W}, 11
    ''')

def chain_load_weights(A):
    VG=8; VA=10; VGO=12; VAO=16
    A(f'''
    v_and_b32 v4, 1, v3
    s_and_b32 s{S_T}, s{S_W}, 1
    s_lshl_b32 s{S_T}, s{S_T}, 1
    v_or_b32 v4, s{S_T}, v4
    v_lshlrev_b32 v4, 1, v4
    v_xor_b32 v4, v4, v2
    v_lshlrev_b32 v4, 4, v4
    s_lshl_b32 s{S_T}, s{S_W}, 2
    v_add_u32 v5, s{S_T}, v3
    v_lshl_add_u32 v{VG}, v5, 13, v4
    s_lshl_b32 s{S_T}, s{S_H}, 8
    v_add_u32 v{VG}, s{S_T}, v{VG}
    v_xor_b32 v{VG+1}, 128, v{VG}
    v_bfe_u32 v4, v1, 2, 2               ; r
    v_and_b32 v5, 1, v4                  ; r&1
    v_lshrrev_b32 v6, 1, v4              ; r>>1
    v_and_b32 v7, 1, v3                  ; bq&1
    v_lshrrev_b32 v17, 1, v3             ; bq>>1
    v_lshl_add_u32 v13, v6, 4, v5
    v_lshl_add_u32 v13, v17, 3, v13
    v_lshl_add_u32 v13, v7, 2, v13
    v_lshlrev_b32 v13, 8, v13
    v_and_b32 v14, 3, v1
    v_lshl_add_u32 v13, v14, 3, v13
    v_lshl_add_u32 v15, v7, 1, v5
    v_lshl_add_u32 v15, v6, 2, v15       ; phi
    s_lshl_b32 s{S_T}, s{S_W}, 1
    v_xor_b32 v14, s{S_T}, v15
    v_lshl_add_u32 v{VA}, v14, 5, v13
    v_xor_b32 v{VA+1}, 32, v{VA}
    v_add_u32 v20, 0x10000, v{VA}
    v_add_u32 v21, 0x10000, v{VA+1}
    v_lshl_add_u32 v13, v6, 5, v5
    v_lshl_add_u32 v13, v7, 4, v13
    v_lshl_add_u32 v13, v17, 2, v13
    v_lshlrev_b32 v13, 8, v13
    v_and_b32 v14, 3, v1
    v_lshl_add_u32 v13, v14, 3, v13
    v_lshl_add_u32 v13, v15, 5, v13
    s_lshl_b32 s{S_T}, s{S_W}, 15
    v_add_u32 v{VAO}, s{S_T}, v13
    v_and_b32 v4, 1, v3
    v_lshlrev_b32 v4, 1, v4
    v_xor_b32 v4, v4, v2
    v_lshlrev_b32 v4, 4, v4
    v_lshl_add_u32 v{VGO}, v3, 10, v4
    s_lshl_b32 s{S_T}, s{S_W}, 8
    v_add_u32 v{VGO}, s{S_T}, v{VGO}
    ''')
    A(f's_load_dwordx2 s[46:47], s[0:1], {KA_WQ}\ns_load_dwordx2 s[48:49], s[0:1], {KA_WK}\ns_load_dwordx2 s[50:51], s[0:1], {KA_WV}\ns_load_dwordx2 s[52:53], s[0:1], {KA_WO}\ns_waitcnt lgkmcnt(0)')
    for m in range(4): srd(A, 56+4*m, 46+2*m, 4*MiB)
    A(f's_lshl_b32 s54, s{S_W}, 10')
    def dma_chunk(c):
        m=c//8; f=c%8; slot=c%8
        for j in range(4):
            A(f's_add_u32 m0, s54, {slot*16384+j*4096}')
            A(f's_mov_b32 s{S_T}, {(64*f+16*j)*8192}')
            A(f'buffer_load_dwordx4 v{VG+(j&1)}, s[{56+4*m}:{59+4*m}], s{S_T} offen lds', tag=('c',c))
    def dst(m,j,f):
        if m==0: return ('a', (j*8+f)*8)
        if m==1: return ('a', 128+(j*8+f)*8)
        if j==0: return ('v', WV+f*8)
        return ('v', (96+f*8) if f<4 else (32+(f-4)*8))
    def wo_dma(F):
        for n in range(16):
            x=((n>>2)&3)<<2
            A(f'v_xor_b32 v22, {x*16}, v{VGO}')
            A(f's_lshl_b32 s{S_T}, s{S_W}, 15')
            A(f's_add_u32 m0, s{S_T}, {F*16384+n*1024}')
            A(f's_mul_i32 s{S_T}, s{S_H}, {128*1024}')
            A(f's_add_u32 s{S_T}, s{S_T}, {(64*F+4*n)*1024}')
            A(f'buffer_load_dwordx4 v22, s[68:71], s{S_T} offen lds', tag=('o',F))
    for c in range(7): dma_chunk(c)
    for c in range(24):
        A.wait_vm_tag(('c',c))
        A('s_waitcnt lgkmcnt(0)')
        A('s_barrier')
        if c+7<24: dma_chunk(c+7)
        m=c//8; f=c%8; slot=c%8
        for j in range(2):
            k,b=dst(m,j,f)
            for i in range(4):
                off=slot*16384+(32*(i>>1)+2*(i&1))*256
                reg=VA+j
                if off>=65536: off-=65536; reg=20+j
                A(f'ds_read_b64_tr_b16 {k}[{b+2*i}:{b+2*i+1}], v{reg} offset:{off}')
    A('s_waitcnt lgkmcnt(0)\ns_barrier')
    wo_dma(0); wo_dma(1)
    def wo_read(F,t,base):
        A(f'v_xor_b32 v23, {t*32}, v{VAO}')
        for i in range(4):
            off=F*16384+(8*(i>>1)+2*(i&1))*256
            A(f'ds_read_b64_tr_b16 v[{base+2*i}:{base+2*i+1}], v23 offset:{off}')
    A.wait_vm_tag(('o',0))
    for t in range(4): wo_read(0,t,WO+(t*2+0)*8)
    for t in range(4,8): wo_read(0,t,WO+((t-4)*2+1)*8)
    A('s_waitcnt lgkmcnt(0)')
    for f in range(8):
        k,b=dst(2,1,f)
        A(f'ds_write_b128 v{LW}, v[{b}:{b+3}] offset:{f*2048}')
        A(f'ds_write_b128 v{LW}, v[{b+4}:{b+7}] offset:{f*2048+1024}')
    A('s_waitcnt lgkmcnt(0)')
    for t in range(4):
        for r in range(8): A(f'v_mov_b32 v{32+t*8+r}, v{WO+(t*2+1)*8+r}')
    A.wait_vm_tag(('o',1))
    for t in range(4): wo_read(1,t,WO+(t*2+1)*8)
    for t in range(4,8): wo_read(1,t,96+(t-4)*8)
    A('s_waitcnt lgkmcnt(0)')
    for t in range(4):
        for F in range(2):
            b=(32+t*8) if F==0 else (96+t*8)
            o=16384+(t*2+F)*2048
            A(f'ds_write_b128 v{LW}, v[{b}:{b+3}] offset:{o}')
            A(f'ds_write_b128 v{LW}, v[{b+4}:{b+7}] offset:{o+1024}')
    A('s_waitcnt lgkmcnt(0)')

def buf_ld(slot, ldsidx):
    b=BUF+slot*8
    return [f'ds_read_b128 v[{b}:{b+3}], v{LW} offset:{ldsidx*2048}',
            f'ds_read_b128 v[{b+4}:{b+7}], v{LW} offset:{ldsidx*2048+1024}']

def chain_init_rings(A, st):
    WSR=f's[{SRD_WS}:{SRD_WS+3}]'
    A(f'''
    v_mov_b32 v4, -1
    v_mov_b32 v5, -1
    v_mov_b32 v6, -1
    v_mov_b32 v7, -1
    v_lshlrev_b32 v8, 4, v0
    buffer_store_dwordx4 v[4:7], v8, {WSR}, s{S_GATH} offen{st}
    buffer_store_dwordx4 v[4:7], v8, {WSR}, s{S_G2} offen{st}
    ''')
    lab=A.newlabel('Lnot0')
    A(f's_cmp_lg_u32 s{S_W}, 0')
    A.branch(f's_cbranch_scc1 {lab}')
    A(f's_load_dwordx2 s[46:47], s[0:1], {KA_MEM0}\ns_waitcnt lgkmcnt(0)')
    srd(A, SRD_W, 46, 8192)
    A(f'''
    v_lshrrev_b32 v9, 5, v{MST}          ; i
    v_lshlrev_b32 v9, 10, v9
    v_bfe_u32 v10, v{MST}, 4, 1          ; t
    v_lshl_add_u32 v9, v10, 5, v9
    v_and_b32 v10, 8, v{MST}
    v_add_u32 v9, v9, v10
    s_lshr_b32 s{S_T}, s{S_H}, 1
    s_lshl_b32 s{S_T}, s{S_T}, 6
    s_and_b32 s{S_T+1}, s{S_H}, 1
    s_lshl_b32 s{S_T+1}, s{S_T+1}, 4
    s_add_u32 s{S_T}, s{S_T}, s{S_T+1}
    buffer_load_dwordx2 v[10:11], v9, s[{SRD_W}:{SRD_W+3}], s{S_T} offen
    v_and_b32 v10, -2, v10
    buffer_store_dwordx2 v[10:11], v{MST}, {WSR}, s{S_MEMW} offen{st}
    ''')
    A.label(lab)
    A('s_waitcnt vmcnt(0)')
    A.reset_queues()

def idle(A,n):
    while n>0:
        k=min(n,16); A(f's_nop {k-1}'); n-=k
def smf(acc, af, kind, b):
    return f'v_smfmac_f32_16x16x64_bf16 v[{acc}:{acc+3}], v[{af}:{af+3}], {kind}[{b}:{b+7}], v{IDX}'
def emit(A,x):
    if x is None: return
    if callable(x): x()
    else: A(x)
def weave(A, mains, fills, per):
    fills=list(fills)
    for n,m in enumerate(mains):
        emit(A,m)
        k = per[n] if isinstance(per,(list,tuple)) else per
        for _ in range(k):
            if fills: emit(A,fills.pop(0))
    return fills

def export(A, exsc):
    if CFG['NO_EXPORT']: return
    WSR=f's[{SRD_WS}:{SRD_WS+3}]'
    A(f'''
    v_lshrrev_b32 v{VACC+2}, 1, v{L16}
    v_alignbit_b32 v{VACC+1}, v{VACC+4}, v{VACC+4}, 16
    s_lshr_b32 s{S_T+3}, s{S_KVM}, 1
    s_add_u32 s{S_T+3}, s{S_T+3}, {VM_OFF}
    buffer_store_dwordx2 v[{VACC}:{VACC+1}], v{VACC+2}, {WSR}, s{S_T+3} offen{exsc}
    s_add_u32 s{S_T+3}, s{S_KVM}, {KM_OFF}
    buffer_store_dwordx4 v[{KMF}:{KMF+3}], v{L16}, {WSR}, s{S_T+3} offen{exsc}
    ''')

def tagacc(p, acc, first, d0, d2):
    if p==0:
        return f'v_or_b32 v{acc}, v{d0}, v{d2}' if first else f'v_or3_b32 v{acc}, v{acc}, v{d0}, v{d2}'
    return f'v_and_b32 v{acc}, v{d0}, v{d2}' if first else f'v_bitop3_b32 v{acc}, v{acc}, v{d0}, v{d2} bitop3:0x80'
def tagcmp(A, p, acc):
    A(f'v_and_b32 v{acc}, 1, v{acc}')
    A(f'v_cmp_ne_u32 vcc, {p}, v{acc}')
def tagset(p, r):
    return f'v_and_b32 v{r}, -2, v{r}' if p==0 else f'v_or_b32 v{r}, 1, v{r}'

def mem_dma(A, lms):
    WSR=f's[{SRD_WS}:{SRD_WS+3}]'
    A(f'v_lshlrev_b32 v{T1}, 4, v{L16}')
    A('s_mov_b32 exec_hi, 0')
    A(f'buffer_load_dword v{T0}, v{T1}, {WSR}, s{S_M1} offen offset:248 sc1')
    A('s_mov_b32 exec_hi, -1')
    A(f's_mov_b32 m0, {lms}')
    for j in range(4): A(f'buffer_load_dwordx4 v{L16}, {WSR}, s{S_M1} offen offset:{j*1024} sc1 lds', tag='md')
    A(f's_mov_b32 m0, {lms+4096}')
    for j in range(4): A(f'buffer_load_dwordx4 v{L16}, {WSR}, s{S_M2} offen offset:{j*1024} sc1 lds', tag='md')

def chain_loop(A, st, exsc, nsteps=64, dbg=True, delayA=0, delayB=0, exsleep=2):
    WSR=f's[{SRD_WS}:{SRD_WS+3}]'
    NH=CFG['NO_HOPS']
    Lend=A.newlabel('Lend')
    Ltop=[A.newlabel('Ltop0'),A.newlabel('Ltop1')]
    Lmd=[A.newlabel('Lmd0'),A.newlabel('Lmd1')]
    tails=[]
    P0=VXF; P1=VXF+1; P2=VXF+2; P3=VXF+3; AX=VXF
    DPP='row_ror:8 row_mask:0xf bank_mask:0xf'
    def zero_qk():
        for r in range(QACC,KACC+8): A(f'v_mov_b32 v{r}, 0')
    def zero_v():
        for r in range(VACC,VACC+8): A(f'v_mov_b32 v{r}, 0')
    def preaddr():
        A(f'''
        v_mov_b32 v{P2}, s{S_TRX}
        v_cndmask_b32 v{P0}, v{TRL}, v{P2}, s[{S_CGE2}:{S_CGE2+1}]
        v_cndmask_b32 v{P1}, v{P2}, v{TRL}, s[{S_CGE2}:{S_CGE2+1}]
        v_lshlrev_b32 v{P2}, 1, v{EXQ}
        v_add_u32 v{P2}, {L_KS-2*L_QS}, v{P2}
        v_lshrrev_b32 v{P3}, 1, v{L16}
        v_add_u32 v{P3}, s{S_KSW}, v{P3}
        ''')
    def vxdma(lds):
        if CFG['NO_DMA']: return []
        return [f's_add_u32 m0, s{S_XW}, {lds}', f's_add_u32 s{S_T}, s{S_KVX}, {VX_OFF}',
                f'buffer_load_dwordx4 v{L16}, {WSR}, s{S_T} offen{exsc} lds',
                f's_add_u32 m0, s{S_XW}, {lds+3072}',
                f'buffer_load_dwordx4 v{L16}, {WSR}, s{S_T} offen offset:1024{exsc} lds']
    def kxld():
        if CFG['NO_DMA']: return []
        return [f's_add_u32 s{S_T}, s{S_KVX}, {KX_OFF}',
                f'buffer_load_dwordx4 v[{KXF}:{KXF+3}], v{L16}, {WSR}, s{S_T} offen{exsc}',
                f'buffer_load_dwordx4 v[{KXF+4}:{KXF+7}], v{L16}, {WSR}, s{S_T} offen offset:1024{exsc}']
    def adv():
        A(f's_lshr_b32 s{S_KVM}, s{S_KVX}, 1\ns_add_u32 s{S_KVX}, s{S_KVX}, {32*8192}')
    A(f'''
    s_mov_b32 s{S_STEP}, 0
    s_lshl_b32 s{S_KVX}, s{S_H}, 13
    s_add_u32 s{S_KVX}, s{S_KVX}, s{S_W2K}
    s_mov_b32 s{S_KVM}, {128*MiB}
    ''')
    sv=CFG['NO_DMA']; CFG['NO_DMA']=False
    for x in kxld()+vxdma(L_B0): A(x)
    if sv:
        for x in vxdma(L_B1): A(x)
    CFG['NO_DMA']=sv
    for i in range(4):
        for x in buf_ld(i,i): A(x)
    zero_qk(); zero_v(); preaddr()
    A('s_waitcnt vmcnt(0) lgkmcnt(0)')
    A(f's_cmp_lg_u32 s{S_W}, 0')
    A.branch(f's_cbranch_scc1 {Ltop[0]}')
    for p in range(2):
        LMS = L_B1 if p==0 else L_B0
        LVX = L_B0 if p==0 else L_B1
        Lfail=A.newlabel('Lfail'); Lq=A.newlabel('Lq'); Lqok=A.newlabel('Lqok'); Lw0=A.newlabel('Lw0')
        Lpr=A.newlabel('Lpr')
        A.label(Lmd[p])
        A.reset_queues()
        CFG['_p']=1-p
        mark(A,'md0')
        idle(A,delayA)
        mem_dma(A,LMS)
        mark(A,'md1')
        export(A, exsc)
        zero_v(); preaddr()
        A('s_mov_b32 exec_hi, 0')
        tagcmp(A,p,T0)
        A('s_mov_b32 exec_hi, -1')
        if not NH: A.branch(f's_cbranch_vccnz {Lpr}', fence=False)
        mark(A,'md2')
        A.wait_vm_tag('md')
        A.label(Ltop[p], fence=False)
        A.reset_queues()
        A('s_waitcnt lgkmcnt(0)')
        mark(A,'md3')
        A('s_barrier')
        mark_acc(A)
        CFG['_p']=p
        mark(A,'q0')
        A.label(Lq, fence=False)
        for f in range(8): A(f'ds_read_b128 v[{MEMF+4*f}:{MEMF+4*f+3}], v{LK} offset:{LMS-L_B0+f*1024}')
        adv()
        qs=[smf(QACC+4*j, MEMF+4*f, 'a', (j*8+f)*8) for f in range(8) for j in range(2)]
        chk=[tagacc(p,T0,f==0,MEMF+4*f,MEMF+4*f+2) for f in range(8)]
        weave(A, qs, chk, [0]*8+[1]*8)
        mark(A,'k0')
        def exch(acc, addr, stride):
            return [f'v_add_f32 v{acc}, v{acc}, v{acc+1}', f'v_add_f32 v{acc+2}, v{acc+2}, v{acc+3}',
                    f'v_add_f32 v{acc+4}, v{acc+4}, v{acc+5}', f'v_add_f32 v{acc+6}, v{acc+6}, v{acc+7}',
                    f'v_cvt_pk_bf16_f32 v{acc}, v{acc}, v{acc+2}', f'v_cvt_pk_bf16_f32 v{acc+4}, v{acc+4}, v{acc+6}',
                    f'ds_write2_b32 v{addr}, v{acc}, v{acc+4} offset0:0 offset1:{stride}']
        def wb():
            A.wait_ds_writes(); A('s_barrier')
        def chkbr():
            if not NH: A.branch(f's_cbranch_vccnz {Lfail}', fence=False)
            A.label(Lqok, fence=False)
        SXA=QACC; SM=KACC
        K=[smf(KACC+4*j, MEMF+4*f, 'a', 128+(j*8+f)*8) for f in range(8) for j in range(2)]
        qe=exch(QACC,EXQ,64)
        SXo=L_SX-L_B0
        A(K[0]); A(f'v_and_b32 v{T0}, 1, v{T0}')
        A(K[1]); A(f'v_cmp_ne_u32 vcc, {p}, v{T0}')
        for n in range(6): A(K[2+n]); A(qe[n])
        A(K[8]); A(qe[6]); A(f'ds_read_b64_tr_b16 v[{BL}:{BL+1}], v{P0}')
        A(K[9]); A(f'ds_read_b64_tr_b16 v[{BL+2}:{BL+3}], v{P0} offset:256'); A(f'ds_read_b64_tr_b16 v[{BH}:{BH+1}], v{P1}')
        A(K[10]); A(f'ds_read_b64_tr_b16 v[{BH+2}:{BH+3}], v{P1} offset:256'); chkbr()
        A(K[11]); A(f'v_add_u32 v{AX}, s{S_XW}, v{LK}')
        A(K[12])
        A(f'v_mfma_f32_16x16x32_bf16 v[{SXA}:{SXA+3}], v[{KXF}:{KXF+3}], v[{BL}:{BL+3}], 0')
        A(f'v_mfma_f32_16x16x32_bf16 v[{SXA}:{SXA+3}], v[{KXF+4}:{KXF+7}], v[{BH}:{BH+3}], v[{SXA}:{SXA+3}]')
        kl=kxld()
        A(K[13]); [A(x) for x in kl[:2]]
        A(K[14]); [A(x) for x in kl[2:]]
        A(K[15])
        A(f'ds_write_b128 v{AX}, v[{SXA}:{SXA+3}] offset:{SXo}')
        mark(A,'s0')
        vseq=[]
        for i in range(4): vseq+= [('L',i),('R',i)]
        vseq+= [('R',i) for i in range(4,8)] + [('L',i) for i in range(4,8)]
        vi=[0]; pendld=[]
        def vnext(n=1, ld=True):
            for _ in range(n):
                k,i=vseq[vi[0]]; vi[0]+=1
                if k=='R': A(smf(VACC,MEMF+4*i,'v',WV+8*i))
                else:
                    A(smf(VACC+4,MEMF+4*i,'v',BUF+8*(i%4)))
                    pendld.extend(buf_ld(i,i+4) if i<4 else buf_ld(i%4,8+(i%4)))
                if ld and pendld: A(pendld.pop(0))
        vnext(1,False)
        A(f'ds_write_b128 v{AX}, v[{SXA}:{SXA+3}] offset:{SXo+4096}')
        vnext(1,False)
        ke=exch(KACC,P2,128)
        for x in ke[:4]: A(x)
        vnext(1,False)
        for x in ke[4:]: A(x)
        A(f'ds_read_b64_tr_b16 v[{KMF}:{KMF+1}], v{P3}')
        A(f'ds_read_b64_tr_b16 v[{KMF+2}:{KMF+3}], v{P3} offset:512')
        A('s_waitcnt lgkmcnt(3)')
        A('s_barrier')
        mark(A,'b2')
        XP=[QACC+4, KACC+4, VXF+4]
        for n in range(3): A(f'ds_read_b128 v[{XP[n]}:{XP[n]+3}], v{AX} offset:{SXo+1024*(n+1)}')
        vnext(2)
        A(f'v_mfma_f32_16x16x32_bf16 v[{SM}:{SM+3}], v[{KMF}:{KMF+3}], v[{BL}:{BL+3}], 0')
        A(f'v_add_u32 v{T1}, s{S_SMW}, v{LK}')
        A(f'v_mfma_f32_16x16x32_bf16 v[{SM}:{SM+3}], v[{KMF}:{KMF+3}], v[{BH}:{BH+3}], v[{SM}:{SM+3}]')
        xa=[f'v_add_f32 v{SXA+r}, v{SXA+r}, v{XP[0]+r}' for r in range(4)] + [f'v_add_f32 v{XP[1]+r}, v{XP[1]+r}, v{XP[2]+r}' for r in range(4)] + [f'v_add_f32 v{SXA+r}, v{SXA+r}, v{XP[1]+r}' for r in range(4)]
        A(xa[0]); A(xa[1])
        vnext(1); A(xa[2])
        vnext(1);
        A(f'v_cndmask_b32 v{SM}, v{SM}, v{SM+1}, s[{S_HI8}:{S_HI8+1}]')
        A(f'ds_write_b32 v{T1}, v{SM} offset:{L_SM-L_B0}')
        mark(A,'sm')
        vd=vxdma(LMS)
        A(xa[3]); A(xa[4])
        vnext(1); A(xa[5]); A(xa[6])
        vnext(1); A(xa[7]); A(xa[8])
        vnext(1); A(xa[9]); A(xa[10]); A(xa[11])
        wb()
        mark(A,'bm')
        MP=KACC+4
        A(f'ds_read_b128 v[{MP}:{MP+3}], v{LK} offset:{L_SM-L_B0}')
        A(f'v_max3_f32 v{T0}, v{SXA}, v{SXA+1}, v{SXA+2}')
        vnext(1,False)
        A(f'ds_read_b64 v[{VXF+6}:{VXF+7}], v{AX} offset:{LVX-L_B0+4096}')
        A(f'ds_read_b64 v[{VXF+4}:{VXF+5}], v{AX} offset:{LVX-L_B0+4096+8}')
        A(f'ds_read_b128 v[{VXF}:{VXF+3}], v{AX} offset:{LVX-L_B0}')
        vnext(1)
        for x in vd[:3]: A(x)
        vnext(1)
        A(f'v_add_f32 v{MP}, v{MP}, v{MP+1}')
        A(f'v_add_f32 v{MP+2}, v{MP+2}, v{MP+3}')
        A(f'v_add_f32 v{SM}, v{MP}, v{MP+2}')
        A(f'v_max3_f32 v{T0}, v{T0}, v{SXA+3}, v{SM}')
        vnext(1)
        A(f'v_max_f32_dpp v{T0}, v{T0}, v{T0} {DPP}')
        A(f'v_mov_b32 v{T1}, v{T0}')
        vnext(1)
        A(f'v_permlane32_swap_b32 v{T0}, v{T1}')
        A(f'v_max_f32 v{T0}, v{T0}, v{T1}')
        A(f'v_mov_b32 v{T1}, v{T0}')
        vnext(1)
        assert vi[0]==16
        A(f'v_permlane16_swap_b32 v{T0}, v{T1}')
        A(f'v_max_f32 v{T0}, v{T0}, v{T1}')
        A(f'v_mul_f32 v{T0}, s{S_C}, v{T0}')
        mark(A,'mx')
        PB=KACC+4; PM=KACC+2; OA=BL; OB=BH
        def fm(r): A(f'v_fma_f32 v{r}, v{r}, s{S_C}, -v{T0}')
        def ex(r): A(f'v_exp_f32 v{r}, v{r}')
        for r in range(4): fm(SXA+r)
        ex(SXA); ex(SXA+1)
        fm(SM)
        ex(SXA+2)
        A(f'v_cvt_pk_bf16_f32 v{PB}, v{SXA}, v{SXA+1}')
        ex(SXA+3)
        ex(SM)
        A(f'v_cvt_pk_bf16_f32 v{PB+1}, v{SXA+2}, v{SXA+3}')
        A(f'v_mov_b32_dpp v{PB+2}, v{PB} {DPP}')
        A(f'v_add_f32 v{VACC}, v{VACC}, v{VACC+1}')
        A(f'v_mov_b32_dpp v{PB+3}, v{PB+1} {DPP}')
        A(f'v_mov_b32_dpp v{SM+1}, v{SM} {DPP}')
        A(f'v_add_f32 v{VACC+2}, v{VACC+2}, v{VACC+3}')
        mark(A,'ex')
        A(f'v_mfma_f32_16x16x32_bf16 v[{OA}:{OA+3}], v[{VXF}:{VXF+3}], v[{PB}:{PB+3}], 0')
        A(f'v_cvt_pk_bf16_f32 v{PM}, v{SM}, v{SM+1}')
        A(f'v_mov_b32 v{PM+1}, 0')
        A(f'v_mfma_f32_16x16x32_bf16 v[{OB}:{OB+3}], v[{VXF+4}:{VXF+7}], v[{PB}:{PB+3}], 0')
        A(f'v_cvt_pk_bf16_f32 v{VACC}, v{VACC}, v{VACC+2}')
        A(f'v_mov_b32 v{VACC+1}, 0')
        A(f'v_add_f32 v{VACC+4}, v{VACC+4}, v{VACC+5}')
        A(f'v_add_f32 v{VACC+6}, v{VACC+6}, v{VACC+7}')
        A(f'v_mfma_f32_16x16x16_bf16 v[{OA}:{OA+3}], v[{VACC}:{VACC+1}], v[{PM}:{PM+1}], v[{OA}:{OA+3}]')
        A(f'v_cvt_pk_bf16_f32 v{VACC+4}, v{VACC+6}, v{VACC+4}')
        A(f'v_mov_b32 v{VACC+5}, 0')
        A(f'v_add_f32 v{SXA}, v{SXA}, v{SXA+1}')
        A(f'v_add_f32 v{SXA+2}, v{SXA+2}, v{SXA+3}')
        A(f'v_mfma_f32_16x16x16_bf16 v[{OB}:{OB+3}], v[{VACC+4}:{VACC+5}], v[{PM}:{PM+1}], v[{OB}:{OB+3}]')
        A(f'v_add_f32 v{SXA}, v{SXA}, v{SM}')
        A(f'v_add_f32 v{T0}, v{SXA}, v{SXA+2}')
        if p==1: A(f's_cmp_eq_u32 s{S_STEP}, {nsteps-1}')
        for x in pendld[:1]: A(x)
        del pendld[:1]
        A(f'v_mov_b32 v{MEMF}, 0')
        A(f'v_add_f32_dpp v{T0}, v{T0}, v{T0} {DPP}')
        A(f'v_mov_b32 v{T1}, v{T0}')
        A(f'v_mov_b32 v{MEMF+1}, 0')
        A(f'v_mov_b32 v{MEMF+2}, 0')
        A(f'v_permlane32_swap_b32 v{T0}, v{T1}')
        A(f'v_add_f32 v{T0}, v{T0}, v{T1}')
        A(f'v_mov_b32 v{T1}, v{T0}')
        A(f'v_cndmask_b32 v{OA}, v{OA}, v{OB}, s[{S_HI8}:{S_HI8+1}]')
        A(f'v_cndmask_b32 v{OA+1}, v{OA+1}, v{OB+1}, s[{S_HI8}:{S_HI8+1}]')
        A(f'v_permlane16_swap_b32 v{T0}, v{T1}')
        A(f'v_add_f32 v{T0}, v{T0}, v{T1}')
        A(f'v_rcp_f32 v{T0}, v{T0}')
        A(f'v_cndmask_b32 v{OA+2}, v{OA+2}, v{OB+2}, s[{S_HI8}:{S_HI8+1}]')
        A(f'v_cndmask_b32 v{OA+3}, v{OA+3}, v{OB+3}, s[{S_HI8}:{S_HI8+1}]')
        if p==1: A.branch(f's_cbranch_scc1 {Lend}', fence=False)
        mark(A,'pv')
        for r in range(4): A(f'v_mul_f32 v{OA+r}, v{OA+r}, v{T0}')
        OP=QACC
        A(f'v_cvt_pk_bf16_f32 v{OP}, v{OA}, v{OA+1}')
        A(f'v_cvt_pk_bf16_f32 v{OP+1}, v{OA+2}, v{OA+3}')
        A(f'ds_write_b64 v{OW}, v[{OP}:{OP+1}]')
        for x in vd[3:]: A(x)
        for r in range(3,16): A(f'v_mov_b32 v{MEMF+r}, 0')
        wb()
        mark(A,'b3')
        OF=BL
        A(f'ds_read_b128 v[{OF}:{OF+3}], v{OR}')
        A(f'ds_read_b128 v[{OF+4}:{OF+7}], v{OR} offset:1024')
        for x in pendld: A(x)
        del pendld[:]
        for r in range(16,28): A(f'v_mov_b32 v{MEMF+r}, 0')
        def epi(pp):
            xa=MEMF+8*pp; tmp=QACC+2*pp
            return [f'v_add_f32 v{xa}, v{xa}, v{xa+1}', f'v_add_f32 v{xa+2}, v{xa+2}, v{xa+3}',
                    f'v_add_f32 v{xa+4}, v{xa+4}, v{xa+5}', f'v_add_f32 v{xa+6}, v{xa+6}, v{xa+7}',
                    f'v_cvt_pk_bf16_f32 v{tmp}, v{xa}, v{xa+2}', f'v_cvt_pk_bf16_f32 v{tmp+1}, v{xa+4}, v{xa+6}',
                    tagset(p,tmp),
                    f'buffer_store_dwordx2 v[{tmp}:{tmp+1}], v{PST}, {WSR}, s{S_PW+pp} offen{st}']
        def W(t,F):
            if t<4: return smf(MEMF+4*t,OF+4*F,'v',WO+(t*2+F)*8)
            li=(t-4)*2+F
            return smf(MEMF+4*t,OF+4*F,'v',BUF+8*(li%4))
        z=[f'v_mov_b32 v{MEMF+r}, 0' for r in range(28,32)]
        r0=buf_ld(0,12); r2=buf_ld(2,14); r1=buf_ld(1,13); r3=buf_ld(3,15)
        A(W(4,0)); A(r0[0])
        A(W(0,0)); A(r0[1])
        A(W(5,0)); A(r2[0])
        A(W(1,0)); A(r2[1])
        A(W(4,1)); A(r1[0])
        A(W(5,1)); A(r1[1])
        A(W(0,1)); A(r3[0])
        A(W(1,1)); A(r3[1])
        e2=epi(2); e0=epi(0); e1=epi(1); e3=epi(3)
        fl=z+e2+e0
        seq=[W(2,0),W(3,0),W(2,1),W(3,1),W(6,0),W(7,0),W(6,1),W(7,1)]
        rest=weave(A, seq, fl+e1, [3,3,3,3,3,3,3,3])
        mark(A,'wo')
        for x in rest: A(x)
        A(f's_add_u32 s{S_STEP}, s{S_STEP}, 1')
        A(f's_cmp_eq_u32 s{S_W}, 0')
        for x in e3: A(x)
        mark(A,'st')
        A.branch(f's_cbranch_scc1 {Lw0}', fence=False)
        sv=(list(A.lq),list(A.vq),set(A.smem))
        for i in range(4):
            for x in buf_ld(i,i): A(x)
        zero_qk(); preaddr()
        if exsleep: A(f's_sleep {exsleep}')
        export(A, exsc)
        zero_v()
        A('s_waitcnt vmcnt(2)' if not CFG['NO_EXPORT'] else 's_waitcnt vmcnt(0)')
        A.branch(f's_branch {Ltop[1-p]}')
        A.label(Lw0)
        A.lq,A.vq,A.smem=sv
        idle(A,delayB)
        Lg0=A.newlabel('Lg0'); Lgr=A.newlabel('Lgr'); Lgo=A.newlabel('Lgo')
        gld=[f'buffer_load_dwordx4 v[{MEMF+4*t}:{MEMF+4*t+3}], v{L16}, {WSR}, s{S_GATH if t<4 else S_G2} offen offset:{(t%4)*1024} sc1' for t in range(8)]
        for x in gld: A(x)
        mark(A,'g1')
        for i in range(4):
            for x in buf_ld(i,i): A(x)
        SEL=BL; RA=BH; RO=VXF+4
        A(f'''
        v_and_b32 v{T0}, 16, v{L16}
        v_mov_b32 v{T1}, 0x3f80
        v_lshlrev_b32 v{T0}, v{T0}, v{T1}
        ''')
        for j in range(4): A(f'v_cndmask_b32 v{SEL+j}, 0, v{T0}, s[{S_SEL+2*j}:{S_SEL+2*j+1}]')
        zero_qk()
        A.label(Lg0, fence=False)
        for t in range(8):
            m=MEMF+4*t
            c='0' if t==0 else f'v[{RA}:{RA+3}]'
            A(f'v_mfma_f32_16x16x32_bf16 v[{RA}:{RA+3}], v[{m}:{m+3}], v[{SEL}:{SEL+3}], {c}')
            A(tagacc(p,T0,t==0,m,m+2))
            if t==0: mark(A,'g2')
        tagcmp(A,p,T0)
        if not NH: A.branch(f's_cbranch_vccnz {Lgr}', fence=False)
        A.label(Lgo, fence=False)
        mark(A,'g3')
        A(f'v_cvt_pk_bf16_f32 v{RO}, v{RA}, v{RA+1}')
        A(f'v_cvt_pk_bf16_f32 v{RO+1}, v{RA+2}, v{RA+3}')
        A(tagset(1-p,RO))
        A(f'buffer_store_dwordx2 v[{RO}:{RO+1}], v{MST}, {WSR}, s{S_MEMW} offen{st}')
        if dbg:
            A(f'''
            s_lshl_b32 s{S_T}, s{S_STEP}, 13
            s_lshl_b32 s{S_T+2}, s{S_H}, 8
            s_add_u32 s{S_T}, s{S_T}, s{S_T+2}
            s_add_u32 s{S_T}, s{S_T}, {MH_OFF}
            buffer_store_dwordx2 v[{RO}:{RO+1}], v{MST}, {WSR}, s{S_T} offen
            ''')
        if p==1: A.branch(f's_branch {Lmd[0]}', fence=False)
        tails.append((p,LMS,Lgr,Lg0,Lgo,gld,Lpr,Lfail,Lqok,Lq))
    for (p,LMS,Lgr,Lg0,Lgo,gld,Lpr,Lfail,Lqok,Lq) in tails:
        A.label(Lgr)
        A.reset_queues()
        A(f's_add_u32 s{S_RETRY}, s{S_RETRY}, 1')
        A(f's_cmp_gt_u32 s{S_RETRY}, {MAXRETRY*100}')
        A.branch(f's_cbranch_scc1 {Lgo}', fence=False)
        A.auto=False
        for ld in gld: A(ld)
        A.auto=True
        A.branch(f's_branch {Lg0}')
        A.label(Lpr)
        A.reset_queues()
        Lp2=A.newlabel('Lp2')
        A(f's_add_u32 s{S_RETRY}, s{S_RETRY}, 0x100')
        A(f's_cmp_gt_u32 s{S_RETRY}, {MAXRETRY*100}')
        A.branch(f's_cbranch_scc1 {Lp2}', fence=False)
        mem_dma(A,LMS)
        A('s_mov_b32 exec_hi, 0')
        tagcmp(A,p,T0)
        A('s_mov_b32 exec_hi, -1')
        A.branch(f's_cbranch_vccnz {Lpr}', fence=False)
        A.label(Lp2)
        A('s_waitcnt vmcnt(0)')
        A.branch(f's_branch {Ltop[p]}')
        A.label(Lfail)
        A.reset_queues()
        A(f's_add_u32 s{S_RETRY}, s{S_RETRY}, 0x10000')
        A(f's_add_u32 s{S_FAIL}, s{S_FAIL}, 1')
        A(f's_cmp_gt_u32 s{S_FAIL}, {MAXRETRY}')
        A.branch(f's_cbranch_scc1 {Lqok}', fence=False)
        A('s_waitcnt lgkmcnt(0)\ns_barrier')
        Lf2=A.newlabel('Lf2')
        A(f's_sub_u32 s{S_KVX}, s{S_KVX}, {32*8192}')
        A(f's_cmp_lg_u32 s{S_W}, 0')
        A.branch(f's_cbranch_scc1 {Lf2}')
        mem_dma(A,LMS)
        A.label(Lf2)
        A.reset_queues()
        for r in range(QACC,KACC+8): A(f'v_mov_b32 v{r}, 0')
        A('s_waitcnt vmcnt(0)\ns_barrier')
        A.branch(f's_branch {Lq}')
    A.label(Lend)
    A.reset_queues()
    A('s_waitcnt lgkmcnt(0)')
    export(A, exsc)
```

```python
from asmlib import *
def header(A, launches):
    for l in launches: A.raw(l)
    A.raw('.amdgcn_target "amdgcn-amd-amdhsa--gfx950"\n.text')
def kstart(A,name):
    A.raw(f'.globl {name}\n.p2align 8\n.type {name},@function\n{name}:')
    A.hist=[]; A.reset_queues(); A.tmfma=0
def kdesc(name, vg=512, acc=256, sg=102):
    return f'''.p2align 6
.amdhsa_kernel {name}
  .amdhsa_next_free_vgpr {vg}
  .amdhsa_next_free_sgpr {sg}
  .amdhsa_accum_offset {acc}
  .amdhsa_group_segment_fixed_size 0
  .amdhsa_kernarg_size 112
  .amdhsa_user_sgpr_count 2
  .amdhsa_user_sgpr_kernarg_segment_ptr 1
  .amdhsa_system_sgpr_workgroup_id_x 1
.end_amdhsa_kernel'''
```

```python
import sys; sys.path.insert(0,'gen')
from asmlib import *
from layout import *
from common import *
import ln, worker as W
def ln_kernel(A):
    kstart(A,'ln_kernel')
    A(f'''
    s_cmp_ge_u32 s2, 256
    s_cbranch_scc1 Lln_exit
    s_load_dwordx2 s[4:5], s[0:1], {KA_X}
    s_load_dwordx2 s[6:7], s[0:1], {KA_WS}
    s_waitcnt lgkmcnt(0)
    ''')
    ln.srd(A,8,4,2*MiB); ln.srd(A,12,6,WS_SIZE)
    ln.ln_rows(A,2,8,12)
    A.label('Lln_exit')
    A('s_endpgm')
def work_kernel(A):
    kstart(A,'work_kernel')
    A(f'''
    s_cmp_ge_u32 s2, 624
    s_cbranch_scc1 Lwk_exit
    s_load_dwordx2 s[6:7], s[0:1], {KA_WS}
    v_lshrrev_b32 v1, 6, v0
    v_mov_b32 v243, v0
    v_readfirstlane_b32 s{W.S_W}, v1
    s_waitcnt lgkmcnt(0)
    ''')
    W.srd(A,W.SRD_WS,6,WS_SIZE)
    W.lane_consts(A,243)
    A(f's_cmp_ge_u32 s2, 112')
    A.branch('s_cbranch_scc0 Lffn')
    A(f's_sub_u32 s2, s2, 112\ns_lshr_b32 s{W.S_RB}, s2, 5\ns_and_b32 s{W.S_ID}, s2, 31')
    W.load_xf(A)
    W.qkv_task(A)
    A.branch('s_branch Lwk_exit')
    A.label('Lffn')
    A.reset_queues()
    A(f's_and_b32 s{W.S_RB}, s2, 15\ns_lshr_b32 s{W.S_ID}, s2, 4')
    W.load_xf(A)
    W.ffn_task(A)
    A.label('Lwk_exit')
    A('s_endpgm')
if __name__=='__main__':
    A=Asm()
    header(A,['; @launch kernel=ln_kernel grid=(256,1,1) block=(256,1,1) lds=0',
              f'; @launch kernel=work_kernel grid=(624,1,1) block=(256,1,1) lds={W.WK_LDS}'])
    ln_kernel(A); work_kernel(A)
    A.raw('.section .rodata,"a"')
    A.raw(kdesc('ln_kernel',64,64)); A.raw(kdesc('work_kernel'))
    open('work.s','w').write(A.text()); print(A.ninst)
```

```python
MiB=1<<20
XN_OFF = 0
QX_OFF = 16*MiB
KX_OFF = 32*MiB
VX_OFF = 48*MiB
KM_OFF = 64*MiB
VM_OFF = 72*MiB
FF_OFF = 80*MiB
P_OFF  = 112*MiB
M_OFF  = 113*MiB
MH_OFF = 114*MiB
P2_OFF = 116*MiB
TS_OFF = 126*MiB
WS_SIZE= 256*MiB
KA_X=0; KA_MEM0=8; KA_WQ=16; KA_WK=24; KA_WV=32; KA_WO=40; KA_WG=64; KA_WU=72; KA_WD=80; KA_OUT=88; KA_DBG=96; KA_WS=104
```

```python
from asmlib import *
from layout import *
def srd(A, d, lo, size):
    A(f's_mov_b32 s{d}, s{lo}\ns_and_b32 s{d+1}, s{lo+1}, 0xffff\ns_mov_b32 s{d+2}, {size}\ns_mov_b32 s{d+3}, 0x20000')
def rnd(A, dst, src):
    A(f'v_cvt_pk_bf16_f32 v{dst}, v{src}, v{src}')
    A(f'v_and_b32 v{dst}, 0xffff0000, v{dst}')
def red32(A, r, t):
    for sh in (8,4,2,1):
        A(f'v_add_f32_dpp v{r}, v{r}, v{r} row_ror:{sh} row_mask:0xf bank_mask:0xf')
    A(f'v_mov_b32 v{t}, v{r}')
    A(f'v_permlane16_swap_b32 v{r}, v{t}')
    A(f'v_add_f32 v{r}, v{r}, v{t}')
def ln_rows(A, s_blk, sx, sws, st=''):
    A(f'''
    v_lshrrev_b32 v1, 5, v0
    s_lshl_b32 s20, s{s_blk}, 3
    v_add_u32 v1, s20, v1                ; row
    v_and_b32 v2, 31, v0
    v_lshlrev_b32 v3, 10, v1
    v_lshl_add_u32 v3, v2, 4, v3
    buffer_load_dwordx4 v[4:7], v3, s[{sx}:{sx+3}], 0 offen
    buffer_load_dwordx4 v[8:11], v3, s[{sx}:{sx+3}], 0 offen offset:512
    v_lshrrev_b32 v12, 4, v1             ; rt
    v_lshrrev_b32 v13, 2, v2             ; ks
    v_lshl_add_u32 v12, v12, 4, v13
    v_and_b32 v13, 3, v2
    v_lshl_add_u32 v12, v12, 2, v13
    v_and_b32 v13, 15, v1
    v_lshl_add_u32 v12, v12, 4, v13
    v_lshlrev_b32 v12, 4, v12
    v_add_u32 v13, 8192, v12
    ''')
    X=16
    for i in range(8):
        A(f'v_lshlrev_b32 v{X+2*i}, 16, v{4+i}')
        A(f'v_and_b32 v{X+2*i+1}, 0xffff0000, v{4+i}')
    A(f'v_add_f32 v32, v{X}, v{X+1}')
    for i in range(2,16): A(f'v_add_f32 v32, v32, v{X+i}')
    red32(A,32,33)
    A('v_mul_f32 v32, 0x3b000000, v32')
    A(f'v_sub_f32 v34, v{X}, v32\nv_mul_f32 v35, v34, v34')
    for i in range(1,16):
        A(f'v_sub_f32 v34, v{X+i}, v32\nv_fmac_f32 v35, v34, v34')
    red32(A,35,33)
    A('v_mul_f32 v35, 0x3b000000, v35')
    rnd(A,32,32); rnd(A,35,35)
    A('v_add_f32 v35, 0x3727c5ac, v35')
    rnd(A,35,35)
    A('v_sqrt_f32 v35, v35')
    rnd(A,35,35)
    A('v_rcp_f32 v36, v35')
    for i in range(0,16,2):
        A(f'v_sub_f32 v{X+i}, v{X+i}, v32\nv_sub_f32 v{X+i+1}, v{X+i+1}, v32')
        A(f'v_cvt_pk_bf16_f32 v37, v{X+i}, v{X+i+1}')
        A(f'v_lshlrev_b32 v{X+i}, 16, v37\nv_and_b32 v{X+i+1}, 0xffff0000, v37')
        for k in (i,i+1):
            A(f'v_mul_f32 v38, v{X+k}, v36')
            A(f'v_fma_f32 v39, -v38, v35, v{X+k}')
            A(f'v_fma_f32 v{X+k}, v39, v36, v38')
        A(f'v_cvt_pk_bf16_f32 v{40+i//2}, v{X+i}, v{X+i+1}')
    A(f'buffer_store_dwordx4 v[40:43], v12, s[{sws}:{sws+3}], 0 offen{st}')
    A(f'buffer_store_dwordx4 v[44:47], v13, s[{sws}:{sws+3}], 0 offen{st}')
```

```python
from asmlib import *
from layout import *
S2_LDS=0x20000+0x4000+0x100
L_OE=0x20000; L_MISC=0x24000
QF=0; KX0=16; KX1=32; KM=48; VX=64; VM=80
VMP=84
SX0=92; SX1=96; SM=100; PB=104; PM=108; OA=112
OF=0
WA=32
PK=48
GA=64
CI=96
XR=124
L16=128; L8=129; OWA=130; GAD=131; SLA=132; XA=133; SEL=136; RA=140; T0=144; T1=145; NEG=146; ZR=147
S_W=3; S_H=4; S_IT=5; S_SEG=6; S_TEAM=7
SRD_WS=8; SRD_W=12; SRD_DBG=16; SRD_X=24; SRD_O=28
S_T=20
S_MASK=32
S_C=48; S_E=49; S_PB=50; S_RETRY=51; S_B8=52; S_B4=53; S_TQ=54; S_EH=55; S_GB=56; S_OEP=57
MAXRETRY=100000000
def srd(A, d, lo, size):
    A(f's_mov_b32 s{d}, s{lo}\ns_and_b32 s{d+1}, s{lo+1}, 0xffff\ns_mov_b32 s{d+2}, {size}\ns_mov_b32 s{d+3}, 0x20000')

def s2_setup(A, st):
    WSR=f's[{SRD_WS}:{SRD_WS+3}]'
    A(f'''
    s_load_dwordx2 s[60:61], s[0:1], {KA_WO}
    s_load_dwordx2 s[62:63], s[0:1], {KA_X}
    s_load_dwordx2 s[64:65], s[0:1], {KA_OUT}
    v_and_b32 v1, 63, v0
    v_and_b32 v2, 15, v1
    v_lshrrev_b32 v3, 4, v1
    v_lshlrev_b32 v{L16}, 4, v1
    v_lshlrev_b32 v{L8}, 3, v1
    s_and_b32 s{S_TQ}, s{S_W}, 1
    s_lshr_b32 s{S_EH}, s{S_W}, 1
    s_mov_b32 s{S_C}, 0x3e0293ee
    s_mov_b32 s{S_RETRY}, 0
    v_mov_b32 v{NEG}, 0xff800000
    v_mov_b32 v{ZR}, 0
    s_lshl_b32 s{S_T}, s{S_TQ}, 4
    v_add_u32 v4, s{S_T}, v2
    v_lshlrev_b32 v5, 2, v3
    ''')
    for tk in range(2):
        for r in range(4):
            A(f'v_add_u32 v6, {16*tk+r}, v5')
            A(f'v_cmp_gt_u32 s[{S_MASK+2*(tk*4+r)}:{S_MASK+2*(tk*4+r)+1}], v6, v4')
    A(f'''
    s_lshl_b32 s{S_T}, s{S_TQ}, 2
    s_lshl_b32 s{S_T+1}, s{S_EH}, 1
    s_add_u32 s{S_T}, s{S_T}, s{S_T+1}
    s_lshl_b32 s{S_T}, s{S_T}, 10
    s_add_u32 s{S_T}, s{S_T}, {L_OE}
    v_add_u32 v{OWA}, s{S_T}, v{L16}
    v_lshlrev_b32 v4, 10, v3
    v_lshl_add_u32 v4, v2, 4, v4
    s_lshl_b32 s{S_T}, s{S_W}, 8
    v_add_u32 v{GAD}, s{S_T}, v4
    v_bfe_u32 v4, v2, 2, 1               ; tt
    v_and_b32 v5, 3, v2
    s_lshl_b32 s{S_T}, s{S_W}, 2
    v_add_u32 v5, s{S_T}, v5             ; t15
    v_lshl_add_u32 v6, v3, 4, v5
    v_lshlrev_b32 v6, 4, v6
    v_lshl_add_u32 v{SLA}, v4, 10, v6
    v_lshl_add_u32 v6, v4, 4, v5
    v_lshlrev_b32 v6, 10, v6
    v_lshl_add_u32 v6, v3, 3, v6
    s_lshl_b32 s{S_T}, s{S_H}, 5
    v_add_u32 v{XA}, s{S_T}, v6
    v_and_b32 v4, 1, v2
    v_lshlrev_b32 v4, 4, v4
    v_mov_b32 v5, 0x3f80
    v_lshlrev_b32 v4, v4, v5
    v_bfe_u32 v5, v2, 1, 2
    ''')
    for j in range(4):
        A(f'v_cmp_eq_u32 vcc, {j}, v5')
        A(f'v_cndmask_b32 v{SEL+j}, 0, v4, vcc')
    A('s_waitcnt lgkmcnt(0)')
    srd(A,SRD_W,60,4*MiB); srd(A,SRD_X,62,2*MiB); srd(A,SRD_O,64,2*MiB)
    A(f'''
    s_lshl_b32 s{S_PB}, s{S_TEAM}, 21
    s_add_u32 s{S_PB}, s{S_PB}, {P2_OFF}
    v_mov_b32 v4, -1
    v_mov_b32 v5, -1
    v_mov_b32 v6, -1
    v_mov_b32 v7, -1
    v_lshlrev_b32 v8, 4, v0
    s_lshl_b32 s{S_T}, s{S_H}, 15
    s_add_u32 s{S_T}, s{S_T}, s{S_PB}
    ''')
    for slot in range(2):
        for i in range(8):
            A(f's_add_u32 s{S_T+1}, s{S_T}, {slot*MiB+i*4096}')
            A(f'buffer_store_dwordx4 v[4:7], v8, {WSR}, s{S_T+1} offen{st}')
    A(f'''
    v_lshlrev_b32 v9, 1, v3
    v_xor_b32 v9, v9, v2
    v_lshlrev_b32 v9, 4, v9
    v_lshl_add_u32 v9, v3, 10, v9
    s_lshl_b32 s{S_T}, s{S_W}, 8
    v_add_u32 v9, s{S_T}, v9
    v_xor_b32 v10, 128, v9
    s_lshl_b32 s{S_T+2}, s{S_W}, 15
    s_lshl_b32 s{S_T+3}, s{S_H}, 17
    ''')
    for n in range(32):
        A(f's_add_u32 m0, s{S_T+2}, {n*1024}')
        A(f's_add_u32 s{S_T}, s{S_T+3}, {n*4096}')
        A(f'buffer_load_dwordx4 v{9+(n&1)}, s[{SRD_W}:{SRD_W+3}], s{S_T} offen lds')
    A(f'''
    v_bfe_u32 v11, v1, 2, 2
    v_lshl_add_u32 v12, v3, 2, v11
    v_lshlrev_b32 v12, 8, v12
    v_and_b32 v13, 3, v1
    v_lshl_add_u32 v12, v13, 3, v12
    v_and_b32 v13, 1, v3
    v_lshl_add_u32 v11, v13, 2, v11
    v_lshl_add_u32 v12, v11, 5, v12
    v_add_u32 v12, s{S_T+2}, v12
    s_waitcnt vmcnt(0)
    ''')
    for c in range(8):
        A(f'v_xor_b32 v13, {c*32}, v12')
        for ks in range(4):
            for u in range(2):
                b=(c*4+ks)*4+2*u
                A(f'ds_read_b64_tr_b16 a[{b}:{b+1}], v13 offset:{ks*8192+u*4096}')
    A('s_waitcnt lgkmcnt(0)')
    A.reset_queues()

def s2_loop(A, st, ldm, nteams, wait_inputs=None, wait_ffn=None):
    WSR=f's[{SRD_WS}:{SRD_WS+3}]'
    Ltop=A.newlabel('L2top'); Lgr=A.newlabel('L2gr'); Lg0=A.newlabel('L2g0'); Lgo=A.newlabel('L2go'); Lend=A.newlabel('L2end')
    A(f's_mov_b32 s{S_IT}, 0\ns_mov_b32 s{S_SEG}, s{S_TEAM}')
    A.label(Ltop)
    A.reset_queues()
    if wait_inputs: wait_inputs()
    A(f'''
    s_lshl_b32 s{S_T}, s{S_SEG}, 5
    s_add_u32 s{S_T}, s{S_T}, s{S_H}
    s_lshl_b32 s{S_B8}, s{S_T}, 13
    s_lshl_b32 s{S_B4}, s{S_T}, 12
    s_lshl_b32 s{S_T+1}, s{S_TQ}, 10
    s_add_u32 s{S_T+1}, s{S_T+1}, s{S_B8}
    s_add_u32 s{S_T+1}, s{S_T+1}, {QX_OFF}
    s_add_u32 s{S_T+2}, s{S_T+1}, 4096
    ''')
    for ks in range(4):
        A(f'buffer_load_dwordx4 v[{QF+4*ks}:{QF+4*ks+3}], v{L16}, {WSR}, s{S_T+1+ks//2} offen offset:{(ks%2)*2048}{ldm}')
    A(f's_add_u32 s{S_T+1}, s{S_B8}, {KX_OFF}\ns_add_u32 s{S_T+2}, s{S_T+1}, 4096\ns_add_u32 s{S_T+3}, s{S_B4}, {KM_OFF}')
    for ks in range(4):
        A(f'buffer_load_dwordx4 v[{KX0+4*ks}:{KX0+4*ks+3}], v{L16}, {WSR}, s{S_T+1+ks//2} offen offset:{(ks%2)*2048}{ldm}')
        A(f'buffer_load_dwordx4 v[{KX1+4*ks}:{KX1+4*ks+3}], v{L16}, {WSR}, s{S_T+1+ks//2} offen offset:{(ks%2)*2048+1024}{ldm}')
        A(f'buffer_load_dwordx4 v[{KM+4*ks}:{KM+4*ks+3}], v{L16}, {WSR}, s{S_T+3} offen offset:{ks*1024}{ldm}')
    A(f'''
    s_lshl_b32 s{S_T+1}, s{S_EH}, 12
    s_add_u32 s{S_T+1}, s{S_T+1}, s{S_B8}
    s_add_u32 s{S_T+1}, s{S_T+1}, {VX_OFF}
    s_lshr_b32 s{S_T+2}, s{S_B4}, 1
    s_lshl_b32 s{S_T+3}, s{S_EH}, 10
    s_add_u32 s{S_T+2}, s{S_T+2}, s{S_T+3}
    s_add_u32 s{S_T+2}, s{S_T+2}, {VM_OFF}
    ''')
    for i in range(4): A(f'buffer_load_dwordx4 v[{VX+4*i}:{VX+4*i+3}], v{L16}, {WSR}, s{S_T+1} offen offset:{i*1024}{ldm}')
    A(f'buffer_load_dwordx2 v[{VM}:{VM+1}], v{L8}, {WSR}, s{S_T+2} offen{ldm}')
    A(f'buffer_load_dwordx2 v[{VM+2}:{VM+3}], v{L8}, {WSR}, s{S_T+2} offen offset:512{ldm}')
    A(f'''
    s_lshr_b32 s{S_E}, s{S_IT}, 1
    s_and_b32 s{S_E}, s{S_E}, 1
    s_and_b32 s{S_T}, s{S_IT}, 1
    s_lshl_b32 s{S_OEP}, s{S_T}, 13
    s_lshl_b32 s{S_T}, s{S_T}, 20
    s_add_u32 s{S_GB}, s{S_T}, s{S_PB}
    ''')
    for ks in range(4):
        for (acc,src) in ((SX0,KX0),(SX1,KX1),(SM,KM)):
            c='0' if ks==0 else f'v[{acc}:{acc+3}]'
            A(f'v_mfma_f32_16x16x32_bf16 v[{acc}:{acc+3}], v[{src+4*ks}:{src+4*ks+3}], v[{QF+4*ks}:{QF+4*ks+3}], {c}')
    for i in range(8): A(f'v_cndmask_b32 v{SX0+i}, v{SX0+i}, v{NEG}, s[{S_MASK+2*i}:{S_MASK+2*i+1}]')
    A(f'''
    v_max3_f32 v{T0}, v{SX0}, v{SX0+1}, v{SX0+2}
    v_max3_f32 v{T1}, v{SX0+3}, v{SX1}, v{SX1+1}
    v_max3_f32 v{T0}, v{T0}, v{SX1+2}, v{SX1+3}
    v_max3_f32 v{T1}, v{T1}, v{SM}, v{SM+1}
    v_max_f32 v{T0}, v{T0}, v{T1}
    v_mov_b32 v{T1}, v{T0}
    v_permlane32_swap_b32 v{T0}, v{T1}
    v_max_f32 v{T0}, v{T0}, v{T1}
    v_mov_b32 v{T1}, v{T0}
    v_permlane16_swap_b32 v{T0}, v{T1}
    v_max_f32 v{T0}, v{T0}, v{T1}
    v_mul_f32 v{T0}, s{S_C}, v{T0}
    ''')
    for i in range(10): A(f'v_fma_f32 v{SX0+i}, v{SX0+i}, s{S_C}, -v{T0}')
    for i in range(10): A(f'v_exp_f32 v{SX0+i}, v{SX0+i}')
    for i in range(5): A(f'v_cvt_pk_bf16_f32 v{PB+i}, v{SX0+2*i}, v{SX0+2*i+1}')
    A(f'v_mov_b32 v{PM+1}, 0')
    for i in range(4): A(f'v_mov_b32 v{VMP+2*i}, v{VM+i}\nv_mov_b32 v{VMP+2*i+1}, 0')
    for i in range(4): A(f'v_mfma_f32_16x16x32_bf16 v[{OA+4*i}:{OA+4*i+3}], v[{VX+4*i}:{VX+4*i+3}], v[{PB}:{PB+3}], 0')
    for i in range(4): A(f'v_mfma_f32_16x16x16_bf16 v[{OA+4*i}:{OA+4*i+3}], v[{VMP+2*i}:{VMP+2*i+1}], v[{PM}:{PM+1}], v[{OA+4*i}:{OA+4*i+3}]')
    A(f'v_add_f32 v{T0}, v{SX0}, v{SX0+1}')
    for i in range(2,10): A(f'v_add_f32 v{T0}, v{T0}, v{SX0+i}')
    A(f'''
    v_mov_b32 v{T1}, v{T0}
    v_permlane32_swap_b32 v{T0}, v{T1}
    v_add_f32 v{T0}, v{T0}, v{T1}
    v_mov_b32 v{T1}, v{T0}
    v_permlane16_swap_b32 v{T0}, v{T1}
    v_add_f32 v{T0}, v{T0}, v{T1}
    v_rcp_f32 v{T0}, v{T0}
    v_add_u32 v{T1}, s{S_OEP}, v{OWA}
    ''')
    for i in range(16): A(f'v_mul_f32 v{OA+i}, v{OA+i}, v{T0}')
    for i in range(8): A(f'v_cvt_pk_bf16_f32 v{SX0+i}, v{OA+2*i}, v{OA+2*i+1}')
    A(f'ds_write_b128 v{T1}, v[{SX0}:{SX0+3}]')
    A(f'ds_write_b128 v{T1}, v[{SX0+4}:{SX0+7}] offset:1024')
    A(f's_add_u32 s{S_T}, s{S_OEP}, {L_OE}\nv_add_u32 v{T1}, s{S_T}, v{L16}')
    A.wait_ds_writes(); A('s_barrier')
    for i in range(8): A(f'ds_read_b128 v[{OF+4*i}:{OF+4*i+3}], v{T1} offset:{i*1024}')
    if wait_ffn: wait_ffn()
    A(f's_lshr_b32 s{S_T+1}, s{S_B4}, 1\ns_add_u32 s{S_T+1}, s{S_T+1}, {FF_OFF}\ns_lshl_b32 s{S_T+2}, s{S_SEG}, 15')
    for i in range(7):
        if i: A(f's_add_u32 s{S_T+1}, s{S_T+1}, {4*MiB}')
        A(f'buffer_load_dwordx4 v[{CI+4*i}:{CI+4*i+3}], v{SLA}, {WSR}, s{S_T+1} offen{ldm}')
    A(f'buffer_load_dwordx2 v[{XR}:{XR+1}], v{XA}, s[{SRD_X}:{SRD_X+3}], s{S_T+2} offen')
    A(f's_lshl_b32 s{S_T}, s{S_W}, 18\ns_add_u32 s{S_T}, s{S_T}, s{S_GB}\ns_lshl_b32 s{S_T+1}, s{S_H}, 10\ns_add_u32 s{S_T}, s{S_T}, s{S_T+1}')
    def epi(c):
        acc=WA+8*(c%2); o=PK+4*(c%2)
        L=[f'v_cvt_pk_bf16_f32 v{o+i}, v{acc+2*i}, v{acc+2*i+1}' for i in range(4)]
        L+=[f'v_and_or_b32 v{o}, v{o}, -2, s{S_E}', f'v_and_or_b32 v{o+2}, v{o+2}, -2, s{S_E}',
            f'buffer_store_dwordx4 v[{o}:{o+3}], v{L16}, {WSR}, s{S_T} offen{st}', f's_add_u32 s{S_T}, s{S_T}, 32768']
        return L
    pend=[]
    for c in range(8):
        n=0
        for ks in range(4):
            for tq in range(2):
                acc=WA+8*(c%2)+4*tq; b=(c*4+ks)*4; o=OF+(tq*4+ks)*4
                cc='0' if ks==0 else f'v[{acc}:{acc+3}]'
                A(f'v_mfma_f32_16x16x32_bf16 v[{acc}:{acc+3}], v[{o}:{o+3}], a[{b}:{b+3}], {cc}')
                n+=1
                if n>=3:
                    for _ in range(2):
                        if pend: A(pend.pop(0))
        pend=epi(c)
    A(f'v_lshlrev_b32 v{RA}, 16, v{XR}\nv_and_b32 v{RA+1}, 0xffff0000, v{XR}\nv_lshlrev_b32 v{RA+2}, 16, v{XR+1}\nv_and_b32 v{RA+3}, 0xffff0000, v{XR+1}')
    for x in pend: A(x)
    for i in range(7):
        for r in range(4): A(f'v_add_f32 v{RA+r}, v{RA+r}, v{CI+4*i+r}')
    A(f's_lshl_b32 s{S_T}, s{S_H}, 15\ns_add_u32 s{S_T}, s{S_T}, s{S_GB}')
    gld=[]
    for jj in range(8):
        gld.append(f's_add_u32 s{S_T+1}, s{S_T}, {jj*4096}')
        gld.append(f'buffer_load_dwordx4 v[{GA+4*jj}:{GA+4*jj+3}], v{GAD}, {WSR}, s{S_T+1} offen sc1')
    for x in gld: A(x)
    A.label(Lg0, fence=False)
    A(f'v_mov_b32 v{T0}, 0')
    R2=CI
    for jj in range(8):
        m=GA+4*jj
        c=f'v[{RA}:{RA+3}]' if jj==0 else f'v[{R2}:{R2+3}]'
        A(f'v_mfma_f32_16x16x32_bf16 v[{R2}:{R2+3}], v[{m}:{m+3}], v[{SEL}:{SEL+3}], {c}')
        A(f'v_bitop3_b32 v{T0}, v{T0}, v{m}, s{S_E} bitop3:0xf6')
        A(f'v_bitop3_b32 v{T0}, v{T0}, v{m+2}, s{S_E} bitop3:0xf6')
    A(f'v_and_b32 v{T0}, 1, v{T0}\nv_cmp_ne_u32 vcc, 0, v{T0}')
    A.branch(f's_cbranch_vccnz {Lgr}', fence=False)
    A.label(Lgo, fence=False)
    A(f'v_cvt_pk_bf16_f32 v{XR}, v{R2}, v{R2+1}\nv_cvt_pk_bf16_f32 v{XR+1}, v{R2+2}, v{R2+3}')
    A(f'buffer_store_dwordx2 v[{XR}:{XR+1}], v{XA}, s[{SRD_O}:{SRD_O+3}], s{S_T+2} offen')
    A(f's_add_u32 s{S_IT}, s{S_IT}, 1\ns_add_u32 s{S_SEG}, s{S_SEG}, {nteams}\ns_cmp_lt_u32 s{S_SEG}, 64')
    A.branch(f's_cbranch_scc1 {Ltop}')
    A.branch(f's_branch {Lend}')
    A.label(Lgr)
    A.reset_queues()
    A(f's_add_u32 s{S_RETRY}, s{S_RETRY}, 1\ns_cmp_gt_u32 s{S_RETRY}, {MAXRETRY}')
    A.branch(f's_cbranch_scc1 {Lgo}', fence=False)
    A('s_sleep 1')
    A.auto=False
    for x in gld: A(x)
    A.auto=True
    A.branch(f's_branch {Lg0}')
    A.label(Lend)
    A.reset_queues()
```

```python
from asmlib import *
from layout import *
WK_LDS=65536
XF=0
ACC=128
WF=192
HF=216
TA=232
VG=240; VG2=241; L16=242; T0=244; T1=245; T2=246; T3=247; TB=248
S_W=3; S_RB=4; S_ID=5
SRD_WS=8; SRD_A=12; SRD_B=16; SRD_C=24
S_T=20; S_M0=28; S_SO=29; S_OUT=30; S_CNT=31
NB=6
def srd(A, d, lo, size):
    A(f's_mov_b32 s{d}, s{lo}\ns_and_b32 s{d+1}, s{lo+1}, 0xffff\ns_mov_b32 s{d+2}, {size}\ns_mov_b32 s{d+3}, 0x20000')

def load_xf(A, ldm=''):
    A(f's_lshl_b32 s{S_T}, s{S_RB}, 2\ns_add_u32 s{S_T}, s{S_T}, s{S_W}\ns_lshl_b32 s{S_T}, s{S_T}, 15\ns_add_u32 s{S_T}, s{S_T}, {XN_OFF}')
    for i in range(32):
        if i and i%4==0: A(f's_add_u32 s{S_T}, s{S_T}, 4096')
        A(f'buffer_load_dwordx4 v[{XF+4*i}:{XF+4*i+3}], v{L16}, s[{SRD_WS}:{SRD_WS+3}], s{S_T} offen offset:{(i%4)*1024}{ldm}')

def lane_consts(A, tid):
    A(f'''
    v_and_b32 v{T0}, 63, v{tid}
    v_lshlrev_b32 v{L16}, 4, v{T0}
    s_lshl_b32 s{S_M0}, s{S_W}, 10
    ''')

def tr_addr_256(A, perm):
    A(f'''
    v_lshrrev_b32 v{T0}, 4, v{L16}       ; lane
    v_bfe_u32 v{T1}, v{T0}, 2, 2         ; r
    v_lshrrev_b32 v{T2}, 4, v{T0}        ; g
    v_lshl_add_u32 v{T3}, v{T2}, {2 if perm else 3}, v{T1}
    v_lshlrev_b32 v{T3}, 8, v{T3}
    v_and_b32 v{T0}, 3, v{T0}
    v_lshl_add_u32 v{T3}, v{T0}, 3, v{T3}
    v_and_b32 v{T2}, 1, v{T2}
    v_lshl_add_u32 v{T1}, v{T2}, 2, v{T1}
    v_lshl_add_u32 v{TA}, v{T1}, 5, v{T3}
    ''')
    for p in range(1,8): A(f'v_xor_b32 v{TA+p}, {p*32}, v{TA}')

def dma_off_256(A, dst, pitch_log2, perm):
    A(f'''
    v_lshrrev_b32 v{T0}, 8, v{L16}       ; l>>4
    v_bfe_u32 v{T1}, v{L16}, 4, 4        ; lo
    {"s_and_b32 s%d, s%d, 1"%(S_T,S_W) if perm else "s_lshr_b32 s%d, s%d, 1"%(S_T,S_W)}
    s_lshl_b32 s{S_T}, s{S_T}, 2
    v_or_b32 v{T2}, s{S_T}, v{T0}
    v_lshlrev_b32 v{T2}, 1, v{T2}
    v_xor_b32 v{T1}, v{T1}, v{T2}
    v_lshlrev_b32 v{T1}, 4, v{T1}
    s_lshl_b32 s{S_T}, s{S_W}, 2
    v_add_u32 v{T0}, s{S_T}, v{T0}
    v_lshl_add_u32 v{dst}, v{T0}, {pitch_log2}, v{T1}
    ''')

class Pipe:
    def __init__(self, A): self.A=A
    def run(self, stages, pre=3):
        A=self.A; n=len(stages)
        for i in range(min(pre,n)): stages[i][0](i%4, ('st',i))
        for i in range(n):
            A.wait_vm_tag(('st',i))
            A('s_waitcnt lgkmcnt(0)')
            A('s_barrier')
            if i+pre<n: stages[i+pre][0]((i+pre)%4, ('st',i+pre))
            stages[i][1](i%4)

def mm_stage(A, slot, items):
    def rd(n):
        ar,off,_=items[n]; b=WF+4*(n%NB)
        A(f'ds_read_b64_tr_b16 v[{b}:{b+1}], v{ar} offset:{slot*16384+off[0]}')
        A(f'ds_read_b64_tr_b16 v[{b+2}:{b+3}], v{ar} offset:{slot*16384+off[1]}')
    D=4
    for n in range(min(D,len(items))): rd(n)
    for n,(ar,off,ms) in enumerate(items):
        b=WF+4*(n%NB); W=f'v[{b}:{b+3}]'
        A(ms[0].format(W=W))
        if n+D<len(items): rd(n+D)
        A(ms[1].format(W=W))

def qkv_task(A, stm='', which=(1,2,0)):
    WSR=f's[{SRD_WS}:{SRD_WS+3}]'
    tr_addr_256(A, False)
    dma_off_256(A, VG, 13, False)
    A(f's_lshl_b32 s{S_T}, s{S_ID}, 8\nv_add_u32 v{VG}, s{S_T}, v{VG}')
    A(f's_load_dwordx2 s[32:33], s[0:1], {KA_WQ}\ns_load_dwordx2 s[34:35], s[0:1], {KA_WK}\ns_load_dwordx2 s[36:37], s[0:1], {KA_WV}\ns_waitcnt lgkmcnt(0)')
    srds=[SRD_A,SRD_B,SRD_C]
    for m in range(3): srd(A, srds[m], 32+2*m, 4*MiB)
    A(f's_lshl_b32 s{S_OUT}, s{S_RB}, 2\ns_add_u32 s{S_OUT}, s{S_OUT}, s{S_W}\ns_lshl_b32 s{S_OUT}, s{S_OUT}, 5\ns_add_u32 s{S_OUT}, s{S_OUT}, s{S_ID}\ns_lshl_b32 s{S_OUT}, s{S_OUT}, 13')
    stages=[]
    for m in which:
        for sidx in range(8):
            def dma(slot, tag, m=m, sidx=sidx):
                for j in range(4):
                    A(f's_add_u32 m0, s{S_M0}, {slot*16384+j*4096}')
                    A(f's_mov_b32 s{S_SO}, {(64*sidx+16*j)*8192}')
                    A(f'buffer_load_dwordx4 v{VG}, s[{srds[m]}:{srds[m]+3}], s{S_SO} offen lds', tag=tag)
            def comp(slot, m=m, sidx=sidx):
                items=[]
                for kk in range(2):
                    ks=2*sidx+kk
                    for p in range(8):
                        ms=[]
                        for tt in range(2):
                            acc=ACC+(p*2+tt)*4; x=XF+(tt*16+ks)*4
                            c='0' if ks==0 else f'v[{acc}:{acc+3}]'
                            if m==2: ms.append(f'v_mfma_f32_16x16x32_bf16 v[{acc}:{acc+3}], v[{x}:{x+3}], {{W}}, {c}')
                            else: ms.append(f'v_mfma_f32_16x16x32_bf16 v[{acc}:{acc+3}], {{W}}, v[{x}:{x+3}], {c}')
                        items.append((TA+p,(kk*8192,kk*8192+1024),ms))
                mm_stage(A,slot,items)
                if sidx==7:
                    base={0:QX_OFF,1:KX_OFF,2:VX_OFF}[m]
                    A(f's_add_u32 s{S_T}, s{S_OUT}, {base}')
                    A(f's_add_u32 s{S_T+1}, s{S_T}, 4096')
                    for fr in range(8):
                        if m==2: srcs=[ACC+(fr*2+0)*4, ACC+(fr*2+1)*4]
                        else:
                            ksq=fr//2; tt=fr%2; srcs=[ACC+((2*ksq)*2+tt)*4, ACC+((2*ksq+1)*2+tt)*4]
                        o=HF+4*(fr%4)
                        for q_,sr in enumerate(srcs):
                            A(f'v_cvt_pk_bf16_f32 v{o+2*q_}, v{sr}, v{sr+1}')
                            A(f'v_cvt_pk_bf16_f32 v{o+2*q_+1}, v{sr+2}, v{sr+3}')
                        A(f'buffer_store_dwordx4 v[{o}:{o+3}], v{L16}, {WSR}, s{S_T+(fr//4)} offen offset:{(fr%4)*1024}{stm}')
            stages.append((dma,comp))
    Pipe(A).run(stages)

def ffn_task(A, stm=''):
    WSR=f's[{SRD_WS}:{SRD_WS+3}]'
    tr_addr_256(A, True)
    dma_off_256(A, VG2, 10, True)
    A(f'''
    v_lshrrev_b32 v{T0}, 7, v{L16}       ; l>>3
    v_bfe_u32 v{T1}, v{L16}, 4, 3        ; q
    v_bfe_u32 v{T2}, v{T0}, 1, 1
    s_and_b32 s{S_T}, s{S_W}, 1
    s_lshl_b32 s{S_T}, s{S_T}, 1
    v_or_b32 v{T2}, s{S_T}, v{T2}
    v_lshlrev_b32 v{T2}, 1, v{T2}
    v_xor_b32 v{T1}, v{T1}, v{T2}
    v_lshlrev_b32 v{T1}, 4, v{T1}
    s_lshl_b32 s{S_T}, s{S_W}, 3
    v_add_u32 v{T0}, s{S_T}, v{T0}
    s_movk_i32 s{S_T}, 3584
    v_mul_lo_u32 v{T0}, v{T0}, s{S_T}
    v_add_u32 v{VG}, v{T0}, v{T1}
    s_lshl_b32 s{S_T}, s{S_ID}, 9
    v_add_u32 v{VG}, s{S_T}, v{VG}
    v_lshrrev_b32 v{T0}, 4, v{L16}
    v_bfe_u32 v{T1}, v{T0}, 2, 2
    v_lshrrev_b32 v{T2}, 4, v{T0}
    v_lshl_add_u32 v{T3}, v{T2}, 3, v{T1}
    v_lshlrev_b32 v{T3}, 7, v{T3}
    v_and_b32 v{T0}, 3, v{T0}
    v_lshl_add_u32 v{T3}, v{T0}, 3, v{T3}
    v_lshrrev_b32 v{T1}, 1, v{T1}
    v_and_b32 v{T2}, 1, v{T2}
    v_lshl_add_u32 v{T1}, v{T2}, 1, v{T1}
    v_lshl_add_u32 v{TB}, v{T1}, 5, v{T3}
    v_xor_b32 v{TB+1}, 32, v{TB}
    v_xor_b32 v{TB+2}, 64, v{TB}
    v_xor_b32 v{TB+3}, 96, v{TB}
    s_lshl_b32 s{S_T}, s{S_ID}, 18
    v_add_u32 v{VG2}, s{S_T}, v{VG2}
    ''')
    A(f's_load_dwordx2 s[32:33], s[0:1], {KA_WG}\ns_load_dwordx2 s[34:35], s[0:1], {KA_WU}\ns_load_dwordx2 s[36:37], s[0:1], {KA_WD}\ns_waitcnt lgkmcnt(0)')
    srd(A,SRD_A,32,512*3584); srd(A,SRD_B,34,512*3584); srd(A,SRD_C,36,1792*1024)
    A('s_mov_b32 s38, 0xc0135761')
    A('s_mov_b32 s39, 0xbdd2d3e8')
    stages=[]
    for grp in range(4):
        for sidx in range(8):
            def dma(slot, tag, grp=grp, sidx=sidx):
                for mi,sr in enumerate((SRD_A,SRD_B)):
                    for j in range(2):
                        A(f's_add_u32 m0, s{S_M0}, {slot*16384+mi*8192+j*4096}')
                        A(f's_mov_b32 s{S_SO}, {(64*sidx+32*j)*3584+grp*128}')
                        A(f'buffer_load_dwordx4 v{VG}, s[{sr}:{sr+3}], s{S_SO} offen lds', tag=tag)
            def comp(slot, grp=grp, sidx=sidx):
                items=[]
                for kk in range(2):
                    ks=2*sidx+kk
                    for p in range(8):
                        ms=[]
                        for tt in range(2):
                            acc=ACC+(p*2+tt)*4; x=XF+(tt*16+ks)*4
                            c='0' if ks==0 else f'v[{acc}:{acc+3}]'
                            ms.append(f'v_mfma_f32_16x16x32_bf16 v[{acc}:{acc+3}], {{W}}, v[{x}:{x+3}], {c}')
                        o=(p//4)*8192+kk*4096
                        items.append((TB+(p%4),(o,o+512),ms))
                mm_stage(A,slot,items)
                if sidx==7:
                    for ft in range(4):
                        for tt in range(2):
                            g_=ACC+(ft*2+tt)*4; u_=ACC+((4+ft)*2+tt)*4
                            for r in range(4):
                                A(f'v_mul_f32 v{T0+r}, v{g_+r}, v{g_+r}')
                            for r in range(4):
                                A(f'v_mov_b32 v{WF+r}, s38')
                                A(f'v_fmac_f32 v{WF+r}, s39, v{T0+r}')
                            for r in range(4): A(f'v_mul_f32 v{T0+r}, v{WF+r}, v{g_+r}')
                            for r in range(4): A(f'v_exp_f32 v{T0+r}, v{T0+r}')
                            for r in range(4): A(f'v_mul_f32 v{u_+r}, v{u_+r}, v{g_+r}')
                            for r in range(4): A(f'v_add_f32 v{T0+r}, 1.0, v{T0+r}')
                            for r in range(4): A(f'v_rcp_f32 v{T0+r}, v{T0+r}')
                            for r in range(4): A(f'v_mul_f32 v{u_+r}, v{u_+r}, v{T0+r}')
                            o=HF+((ft//2)*2+tt)*4+(ft%2)*2
                            A(f'v_cvt_pk_bf16_f32 v{o}, v{u_}, v{u_+1}')
                            A(f'v_cvt_pk_bf16_f32 v{o+1}, v{u_+2}, v{u_+3}')
            stages.append((dma,comp))
        for cq in range(4):
            def dma(slot, tag, grp=grp, cq=cq):
                for j in range(4):
                    A(f's_add_u32 m0, s{S_M0}, {slot*16384+j*4096}')
                    A(f's_mov_b32 s{S_SO}, {(64*grp+16*j)*1024+cq*256}')
                    A(f'buffer_load_dwordx4 v{VG2}, s[{SRD_C}:{SRD_C+3}], s{S_SO} offen lds', tag=tag)
            def comp(slot, grp=grp, cq=cq):
                items=[]
                for k2 in range(2):
                    for p in range(8):
                        ms=[]
                        for tt in range(2):
                            acc=((cq*8+p)*2+tt)*4; h=HF+(k2*2+tt)*4
                            c='0' if (grp==0 and k2==0) else f'a[{acc}:{acc+3}]'
                            ms.append(f'v_mfma_f32_16x16x32_bf16 a[{acc}:{acc+3}], {{W}}, v[{h}:{h+3}], {c}')
                        items.append((TA+p,(k2*8192,k2*8192+4096),ms))
                mm_stage(A,slot,items)
            stages.append((dma,comp))
    Pipe(A).run(stages)
    A(f's_lshl_b32 s{S_OUT}, s{S_RB}, 2\ns_add_u32 s{S_OUT}, s{S_OUT}, s{S_W}\ns_lshl_b32 s{S_OUT}, s{S_OUT}, 16\ns_lshl_b32 s{S_T}, s{S_ID}, 22\ns_add_u32 s{S_OUT}, s{S_OUT}, s{S_T}\ns_add_u32 s{S_OUT}, s{S_OUT}, {FF_OFF}')
    for i in range(64):
        if i and i%4==0: A(f's_add_u32 s{S_OUT}, s{S_OUT}, 4096')
        A(f'buffer_store_dwordx4 a[{4*i}:{4*i+3}], v{L16}, {WSR}, s{S_OUT} offen offset:{(i%4)*1024}{stm}')
```

```python
import sys; sys.path.insert(0,'gen')
from asmlib import *
from layout import *
from common import *
import k_work, worker as W, chain4 as C, stage2 as S2
def ticket(A, sdbg, off_sreg, dst, lmisc, lab):
    A(f'''
    v_mov_b32 v1, 1
    v_mov_b32 v2, s{off_sreg}
    v_mov_b32 v3, {lmisc}
    v_cmp_eq_u32 vcc, 0, v0
    s_and_saveexec_b64 s[50:51], vcc
    s_cbranch_execz {lab}
    buffer_atomic_add v1, v2, s[{sdbg}:{sdbg+3}], 0 offen sc0
    s_waitcnt vmcnt(0)
    ds_write_b32 v3, v1
    s_waitcnt lgkmcnt(0)
    ''')
    A.label(lab)
    A(f'''
    s_mov_b64 exec, s[50:51]
    s_barrier
    ds_read_b32 v1, v3
    s_waitcnt lgkmcnt(0)
    v_readfirstlane_b32 s{dst}, v1
    s_nop 3
    ''')
def team_barrier(A, sdbg, off_sreg, sw, n, pfx):
    A(f'''
    s_waitcnt vmcnt(0) lgkmcnt(0)
    s_barrier
    s_cmp_lg_u32 s{sw}, 0
    s_cbranch_scc1 {pfx}2
    v_mov_b32 v1, 1
    v_mov_b32 v2, s{off_sreg}
    s_mov_b64 exec, 1
    buffer_atomic_add v1, v2, s[{sdbg}:{sdbg+3}], 0 offen
    s_mov_b32 s66, 0
    ''')
    A.label(pfx+'1')
    A(f'''
    buffer_load_dword v1, v2, s[{sdbg}:{sdbg+3}], 0 offen sc1
    s_waitcnt vmcnt(0)
    v_readfirstlane_b32 s67, v1
    s_add_u32 s66, s66, 1
    s_cmp_gt_u32 s66, 3000000
    s_cbranch_scc1 {pfx}3
    s_cmp_lt_u32 s67, {n}
    s_cbranch_scc1 {pfx}1
    ''')
    A.label(pfx+'3')
    A('s_mov_b64 exec, -1')
    A.label(pfx+'2')
    A.reset_queues()
    A('s_barrier')
def chain_kernel(A):
    kstart(A,'chain_kernel')
    A(f'''
    s_cmp_ge_u32 s2, 256
    s_cbranch_scc1 Lch_exit
    s_getreg_b32 s6, hwreg(HW_REG_XCC_ID)
    s_and_b32 s6, s6, 15
    s_cmp_lg_u32 s6, 0
    s_cbranch_scc1 Lch_exit
    s_load_dwordx2 s[46:47], s[0:1], {KA_WS}
    s_load_dwordx2 s[48:49], s[0:1], {KA_DBG}
    v_lshrrev_b32 v1, 6, v0
    s_nop 0
    v_readfirstlane_b32 s{C.S_W}, v1
    s_waitcnt lgkmcnt(0)
    ''')
    C.srd(A,C.SRD_WS,46,WS_SIZE); C.srd(A,C.SRD_DBG,48,256)
    A('s_mov_b32 s7, 0')
    ticket(A,C.SRD_DBG,7,C.S_H,C.L_MISC,'Lch_t1')
    A(f's_cmp_ge_u32 s{C.S_H}, 32\ns_cbranch_scc1 Lch_exit')
    C.chain_setup(A)
    C.chain_init_rings(A,'')
    C.chain_load_weights(A)
    A('s_mov_b32 s7, 64')
    team_barrier(A,C.SRD_DBG,7,C.S_W,32,'Lch_r')
    C.chain_loop(A,'','',dbg=False,delayA=48,delayB=48)
    A.label('Lch_exit')
    A('s_endpgm')
def s2_kernel(A, nteams):
    kstart(A,'s2_kernel')
    A(f'''
    s_cmp_ge_u32 s2, 256
    s_cbranch_scc1 Ls2_exit
    s_getreg_b32 s{S2.S_TEAM}, hwreg(HW_REG_XCC_ID)
    s_and_b32 s{S2.S_TEAM}, s{S2.S_TEAM}, 15
    s_cmp_ge_u32 s{S2.S_TEAM}, {nteams}
    s_cbranch_scc1 Ls2_exit
    s_load_dwordx2 s[46:47], s[0:1], {KA_WS}
    s_load_dwordx2 s[48:49], s[0:1], {KA_DBG}
    v_lshrrev_b32 v1, 6, v0
    s_nop 0
    v_readfirstlane_b32 s{S2.S_W}, v1
    s_waitcnt lgkmcnt(0)
    ''')
    S2.srd(A,S2.SRD_WS,46,WS_SIZE); S2.srd(A,S2.SRD_DBG,48,256)
    A(f's_lshl_b32 s68, s{S2.S_TEAM}, 2')
    ticket(A,S2.SRD_DBG,68,S2.S_H,S2.L_MISC,'Ls2_t1')
    A(f's_cmp_ge_u32 s{S2.S_H}, 32\ns_cbranch_scc1 Ls2_exit')
    S2.s2_setup(A,'')
    A('s_add_u32 s68, s68, 64')
    team_barrier(A,S2.SRD_DBG,68,S2.S_W,32,'Ls2_r')
    S2.s2_loop(A,'','',nteams)
    A.label('Ls2_exit')
    A('s_endpgm')
def gen(path):
    A=Asm()
    header(A,['; @launch kernel=ln_kernel grid=(256,1,1) block=(256,1,1) lds=0',
              f'; @launch kernel=work_kernel grid=(624,1,1) block=(256,1,1) lds={W.WK_LDS}',
              f'; @launch kernel=chain_kernel grid=(256,1,1) block=(256,1,1) lds={C.CHAIN_LDS}',
              f'; @launch kernel=s2_kernel grid=(256,1,1) block=(256,1,1) lds={S2.S2_LDS}'])
    k_work.ln_kernel(A); k_work.work_kernel(A); chain_kernel(A); s2_kernel(A,4)
    A.raw('.section .rodata,"a"')
    for k in (kdesc('ln_kernel',64,64),kdesc('work_kernel'),kdesc('chain_kernel'),kdesc('s2_kernel')): A.raw(k)
    open(path,'w').write(A.text()); print(A.ninst)
if __name__=='__main__':
    gen('full1.s')
```

```python
from asmlib import *
from layout import *

L_B0=0x20000; L_B1=0x22000; L_QS=0x24000; L_OE=0x24000; L_KS=0x24800; L_SX=0x25800; L_SM=0x27400; L_Z=0x27800; L_MISC=0x27A00
CHAIN_LDS=0x27B00
MEMF=0; QACC=32; KACC=40; VACC=48; BL=56; BH=60; KXF=64; KMF=72; VXF=76
IDX=84; FLG=85; LW=86; LK=87; EXQ=88; TRL=89; OW=90; OR=91; PST=92; MST=93; T0=94; T1=95
BUF=96; WV=128; WO=192
S_W=3; S_H=4; S_STEP=5
SRD_WS=8; SRD_W=12; SRD_DBG=16
S_T=20
S_GATH=24; S_G2=25; S_MEMW=26; S_M1=27; S_M2=28; S_KVX=29; S_KVM=30; S_W2K=31
S_SEL=32; S_HI8=40; S_C=42; S_FAIL=44; S_RETRY=45
S_PW=72
S_CGE2=76
S_M3=84; S_GL1=85; S_GL2=86; S_FA=91; S_PF=92; S_XW=87; S_KSW=88; S_SMW=89; S_TRX=90
MAXRETRY=2000000
CFG=dict(ABS=False,NO_DMA=False,NO_EXPORT=False,NO_HOPS=False,M0=None,M1=None)
ABS=['q0','st','g1','g3','md1','md3']
def mark(A,name):
    if CFG.get('ABS') and name in ABS and CFG.get('_p',0)==0:
        i=ABS.index(name)
        regs=[(78,79),(80,81),(82,83),(96,97),(98,99),(100,101)][i]
        A(f's_memtime s[{regs[0]}:{regs[1]}]')
    if CFG['M0']==name: A('s_memtime s[78:79]')
    if CFG['M1']==name: A('s_memtime s[80:81]')
def mark_acc(A):
    if CFG['M0']:
        A('s_waitcnt lgkmcnt(0)\ns_sub_u32 s82, s80, s78\ns_add_u32 s94, s94, s82')

def srd(A, d, lo, size):
    A(f's_mov_b32 s{d}, s{lo}\ns_and_b32 s{d+1}, s{lo+1}, 0xffff\ns_mov_b32 s{d+2}, {size}\ns_mov_b32 s{d+3}, 0x20000')

def chain_setup(A):
    A(f'''
    v_and_b32 v1, 63, v0                 ; lane
    v_and_b32 v2, 15, v1                 ; lo
    v_lshrrev_b32 v3, 4, v1              ; g
    v_lshlrev_b32 v{FLG}, 4, v1
    s_lshl_b32 s{S_T}, s{S_W}, 15
    v_add_u32 v{LW}, s{S_T}, v{FLG}
    v_add_u32 v{LK}, {L_B0}, v{FLG}
    v_mov_b32 v4, 0x4444
    v_mov_b32 v5, 0xeeee
    v_and_b32 v6, 1, v1
    v_cmp_eq_u32 vcc, 0, v6
    v_cndmask_b32 v{IDX}, v5, v4, vcc
    v_cmp_lt_u32 s[{S_HI8}:{S_HI8+1}], 7, v2
    v_lshlrev_b32 v4, 4, v2
    v_lshl_add_u32 v4, v3, 2, v4
    s_lshl_b32 s{S_T}, s{S_W}, 9
    s_add_u32 s{S_T}, s{S_T}, {L_QS}
    v_add_u32 v{EXQ}, s{S_T}, v4
    v_lshrrev_b32 v4, 2, v1
    v_lshlrev_b32 v4, 4, v4
    v_lshl_add_u32 v4, v6, 3, v4
    v_add_u32 v{TRL}, s{S_T}, v4
    v_and_b32 v4, 2, v1
    v_cmp_ne_u32 s[{S_CGE2}:{S_CGE2+1}], 0, v4
    v_and_b32 v7, 7, v2
    v_lshl_add_u32 v4, v3, 3, v7
    v_lshlrev_b32 v4, 4, v4
    v_lshrrev_b32 v5, 3, v2
    v_lshl_add_u32 v4, v5, 3, v4
    s_lshl_b32 s{S_T}, s{S_W}, 9
    s_add_u32 s{S_T}, s{S_T}, {L_OE}
    v_add_u32 v{OW}, s{S_T}, v4
    v_lshrrev_b32 v5, 1, v2
    v_lshl_add_u32 v4, v3, 3, v5
    v_lshlrev_b32 v4, 4, v4
    v_lshl_add_u32 v4, v6, 9, v4
    v_add_u32 v{OR}, {L_OE}, v4
    v_mov_b32 v4, 0
    v_mov_b32 v5, 0
    v_lshlrev_b32 v8, 3, v1
    v_add_u32 v8, {L_Z}, v8
    ds_write_b64 v8, v[4:5]
    s_lshl_b32 s{S_XW}, s{S_W}, 10
    s_add_u32 s{S_KSW}, s{S_XW}, {L_KS-L_B0//2}
    s_lshl_b32 s{S_SMW}, s{S_W}, 2
    s_mov_b32 s{S_TRX}, {L_Z}
    v_lshrrev_b32 v4, 3, v2
    v_lshlrev_b32 v4, 13, v4
    v_lshrrev_b32 v8, 1, v3
    v_lshl_add_u32 v8, v8, 3, v7
    v_lshl_add_u32 v4, v8, 4, v4
    v_and_b32 v9, 1, v3
    v_lshl_add_u32 v4, v9, 3, v4
    s_lshl_b32 s{S_T}, s{S_W}, 16
    v_add_u32 v{PST}, s{S_T}, v4
    v_lshrrev_b32 v4, 2, v7              ; rho>>1
    v_lshlrev_b32 v4, 1, v4
    v_and_b32 v8, 1, v7
    v_or_b32 v4, v4, v8                  ; rho
    v_lshrrev_b32 v8, 1, v3
    v_lshl_add_u32 v4, v8, 2, v4         ; i
    v_bfe_u32 v8, v7, 1, 1               ; t
    v_lshl_add_u32 v4, v4, 1, v8
    v_lshlrev_b32 v4, 4, v4
    v_lshl_add_u32 v{MST}, v9, 3, v4
    v_lshrrev_b32 v4, 1, v7
    v_cmp_eq_u32 s[{S_SEL}:{S_SEL+1}], 0, v4
    v_cmp_eq_u32 s[{S_SEL+2}:{S_SEL+3}], 1, v4
    v_cmp_eq_u32 s[{S_SEL+4}:{S_SEL+5}], 2, v4
    v_cmp_eq_u32 s[{S_SEL+6}:{S_SEL+7}], 3, v4
    s_mov_b32 s{S_C}, 0x3e0293ee
    s_mov_b32 s{S_RETRY}, 0
    s_mov_b32 s{S_FAIL}, 0
    s_lshl_b32 s{S_T}, s{S_H}, 13
    s_add_u32 s{S_GATH}, s{S_T}, {P_OFF}
    s_add_u32 s{S_G2}, s{S_GATH}, 4096
    s_lshl_b32 s{S_T}, s{S_H}, 8
    s_add_u32 s{S_PW}, s{S_T}, {P_OFF}
    s_add_u32 s{S_PW+1}, s{S_PW}, 16384
    s_add_u32 s{S_PW+2}, s{S_PW}, 32768
    s_add_u32 s{S_PW+3}, s{S_PW}, 49152
    s_add_u32 s{S_MEMW}, s{S_T}, {M_OFF}
    s_mov_b32 s{S_M1}, {M_OFF-L_B0}
    s_mov_b32 s{S_M2}, {M_OFF+4096-L_B0}
    s_mov_b32 s{S_M3}, {M_OFF-16*L_B0}
    s_sub_u32 s{S_GL1}, s{S_GATH}, {L_B0}
    s_sub_u32 s{S_GL2}, s{S_G2}, {L_B0}
    s_lshl_b32 s{S_W2K}, s{S_W}, 11
    ''')

def chain_load_weights(A):
    VG=8; VA=10; VGO=12; VAO=16
    A(f'''
    v_and_b32 v4, 1, v3
    s_and_b32 s{S_T}, s{S_W}, 1
    s_lshl_b32 s{S_T}, s{S_T}, 1
    v_or_b32 v4, s{S_T}, v4
    v_lshlrev_b32 v4, 1, v4
    v_xor_b32 v4, v4, v2
    v_lshlrev_b32 v4, 4, v4
    s_lshl_b32 s{S_T}, s{S_W}, 2
    v_add_u32 v5, s{S_T}, v3
    v_lshl_add_u32 v{VG}, v5, 13, v4
    s_lshl_b32 s{S_T}, s{S_H}, 8
    v_add_u32 v{VG}, s{S_T}, v{VG}
    v_xor_b32 v{VG+1}, 128, v{VG}
    v_bfe_u32 v4, v1, 2, 2               ; r
    v_and_b32 v5, 1, v4                  ; r&1
    v_lshrrev_b32 v6, 1, v4              ; r>>1
    v_and_b32 v7, 1, v3                  ; bq&1
    v_lshrrev_b32 v17, 1, v3             ; bq>>1
    v_lshl_add_u32 v13, v6, 4, v5
    v_lshl_add_u32 v13, v17, 3, v13
    v_lshl_add_u32 v13, v7, 2, v13
    v_lshlrev_b32 v13, 8, v13
    v_and_b32 v14, 3, v1
    v_lshl_add_u32 v13, v14, 3, v13
    v_lshl_add_u32 v15, v7, 1, v5
    v_lshl_add_u32 v15, v6, 2, v15       ; phi
    s_lshl_b32 s{S_T}, s{S_W}, 1
    v_xor_b32 v14, s{S_T}, v15
    v_lshl_add_u32 v{VA}, v14, 5, v13
    v_xor_b32 v{VA+1}, 32, v{VA}
    v_add_u32 v20, 0x10000, v{VA}
    v_add_u32 v21, 0x10000, v{VA+1}
    v_lshl_add_u32 v13, v6, 5, v5
    v_lshl_add_u32 v13, v7, 4, v13
    v_lshl_add_u32 v13, v17, 2, v13
    v_lshlrev_b32 v13, 8, v13
    v_and_b32 v14, 3, v1
    v_lshl_add_u32 v13, v14, 3, v13
    v_lshl_add_u32 v13, v15, 5, v13
    s_lshl_b32 s{S_T}, s{S_W}, 15
    v_add_u32 v{VAO}, s{S_T}, v13
    v_and_b32 v4, 1, v3
    v_lshlrev_b32 v4, 1, v4
    v_xor_b32 v4, v4, v2
    v_lshlrev_b32 v4, 4, v4
    v_lshl_add_u32 v{VGO}, v3, 10, v4
    s_lshl_b32 s{S_T}, s{S_W}, 8
    v_add_u32 v{VGO}, s{S_T}, v{VGO}
    ''')
    A(f's_load_dwordx2 s[46:47], s[0:1], {KA_WQ}\ns_load_dwordx2 s[48:49], s[0:1], {KA_WK}\ns_load_dwordx2 s[50:51], s[0:1], {KA_WV}\ns_load_dwordx2 s[52:53], s[0:1], {KA_WO}\ns_waitcnt lgkmcnt(0)')
    for m in range(4): srd(A, 56+4*m, 46+2*m, 4*MiB)
    A(f's_lshl_b32 s54, s{S_W}, 10')
    def dma_chunk(c):
        m=c//8; f=c%8; slot=c%8
        for j in range(4):
            A(f's_add_u32 m0, s54, {slot*16384+j*4096}')
            A(f's_mov_b32 s{S_T}, {(64*f+16*j)*8192}')
            A(f'buffer_load_dwordx4 v{VG+(j&1)}, s[{56+4*m}:{59+4*m}], s{S_T} offen lds', tag=('c',c))
    def dst(m,j,f):
        if m==0: return ('a', (j*8+f)*8)
        if m==1: return ('a', 128+(j*8+f)*8)
        if j==0: return ('v', WV+f*8)
        return ('v', (96+f*8) if f<4 else (32+(f-4)*8))
    def wo_dma(F):
        for n in range(16):
            x=((n>>2)&3)<<2
            A(f'v_xor_b32 v22, {x*16}, v{VGO}')
            A(f's_lshl_b32 s{S_T}, s{S_W}, 15')
            A(f's_add_u32 m0, s{S_T}, {F*16384+n*1024}')
            A(f's_mul_i32 s{S_T}, s{S_H}, {128*1024}')
            A(f's_add_u32 s{S_T}, s{S_T}, {(64*F+4*n)*1024}')
            A(f'buffer_load_dwordx4 v22, s[68:71], s{S_T} offen lds', tag=('o',F))
    for c in range(7): dma_chunk(c)
    for c in range(24):
        A.wait_vm_tag(('c',c))
        A('s_waitcnt lgkmcnt(0)')
        A('s_barrier')
        if c+7<24: dma_chunk(c+7)
        m=c//8; f=c%8; slot=c%8
        for j in range(2):
            k,b=dst(m,j,f)
            for i in range(4):
                off=slot*16384+(32*(i>>1)+2*(i&1))*256
                reg=VA+j
                if off>=65536: off-=65536; reg=20+j
                A(f'ds_read_b64_tr_b16 {k}[{b+2*i}:{b+2*i+1}], v{reg} offset:{off}')
    A('s_waitcnt lgkmcnt(0)\ns_barrier')
    wo_dma(0); wo_dma(1)
    def wo_read(F,t,base):
        A(f'v_xor_b32 v23, {t*32}, v{VAO}')
        for i in range(4):
            off=F*16384+(8*(i>>1)+2*(i&1))*256
            A(f'ds_read_b64_tr_b16 v[{base+2*i}:{base+2*i+1}], v23 offset:{off}')
    A.wait_vm_tag(('o',0))
    for t in range(4): wo_read(0,t,WO+(t*2+0)*8)
    for t in range(4,8): wo_read(0,t,WO+((t-4)*2+1)*8)
    A('s_waitcnt lgkmcnt(0)')
    for f in range(8):
        k,b=dst(2,1,f)
        A(f'ds_write_b128 v{LW}, v[{b}:{b+3}] offset:{f*2048}')
        A(f'ds_write_b128 v{LW}, v[{b+4}:{b+7}] offset:{f*2048+1024}')
    A('s_waitcnt lgkmcnt(0)')
    for t in range(4):
        for r in range(8): A(f'v_mov_b32 v{32+t*8+r}, v{WO+(t*2+1)*8+r}')
    A.wait_vm_tag(('o',1))
    for t in range(4): wo_read(1,t,WO+(t*2+1)*8)
    for t in range(4,8): wo_read(1,t,96+(t-4)*8)
    A('s_waitcnt lgkmcnt(0)')
    for t in range(4):
        for F in range(2):
            b=(32+t*8) if F==0 else (96+t*8)
            o=16384+(t*2+F)*2048
            A(f'ds_write_b128 v{LW}, v[{b}:{b+3}] offset:{o}')
            A(f'ds_write_b128 v{LW}, v[{b+4}:{b+7}] offset:{o+1024}')
    A('s_waitcnt lgkmcnt(0)')

def buf_ld(slot, ldsidx):
    b=BUF+slot*8
    return [f'ds_read_b128 v[{b}:{b+3}], v{LW} offset:{ldsidx*2048}',
            f'ds_read_b128 v[{b+4}:{b+7}], v{LW} offset:{ldsidx*2048+1024}']

def chain_init_rings(A, st):
    WSR=f's[{SRD_WS}:{SRD_WS+3}]'
    A(f'''
    v_mov_b32 v4, -1
    v_mov_b32 v5, -1
    v_mov_b32 v6, -1
    v_mov_b32 v7, -1
    v_lshlrev_b32 v8, 4, v0
    buffer_store_dwordx4 v[4:7], v8, {WSR}, s{S_GATH} offen{st}
    buffer_store_dwordx4 v[4:7], v8, {WSR}, s{S_G2} offen{st}
    ''')
    A(f's_load_dwordx2 s[46:47], s[0:1], {KA_MEM0}\ns_waitcnt lgkmcnt(0)')
    srd(A, SRD_W, 46, 8192)
    A(f'''
    v_mov_b32 v10, 0
    v_mov_b32 v11, 0
    buffer_store_dwordx2 v[10:11], v{MST}, {WSR}, s{S_MEMW} offen{st}
    v_lshrrev_b32 v9, 1, v2
    v_lshlrev_b32 v9, 10, v9
    v_lshrrev_b32 v10, 1, v3
    v_lshl_add_u32 v9, v10, 6, v9
    v_and_b32 v10, 1, v2
    v_lshl_add_u32 v9, v10, 5, v9
    v_and_b32 v10, 1, v3
    v_lshl_add_u32 v9, v10, 4, v9
    s_lshl_b32 s{S_T}, s{S_W}, 8
    s_add_u32 m0, s{S_W2K}, {L_B1}
    s_nop 0
    buffer_load_dwordx4 v9, s[{SRD_W}:{SRD_W+3}], s{S_T} offen lds
    s_add_u32 m0, s{S_W2K}, {L_B1+1024-128}
    s_nop 0
    buffer_load_dwordx4 v9, s[{SRD_W}:{SRD_W+3}], s{S_T} offen offset:128 lds
    s_waitcnt vmcnt(0)
    ''')
    A.reset_queues()

def idle(A,n):
    while n>0:
        k=min(n,16); A(f's_nop {k-1}'); n-=k
FILL=dict(bx_pre=0,bx_post=0,bm_pre=0,bm_post=0,b3_pre=0,b3_post=0)
def fill(A,name):
    for _ in range(FILL[name]): A(f'v_mov_b32 v{IDX}, v{IDX}') if False else A(f'v_mov_b32 v{PST}, v{PST}')
def smf(acc, af, kind, b):
    return f'v_smfmac_f32_16x16x64_bf16 v[{acc}:{acc+3}], v[{af}:{af+3}], {kind}[{b}:{b+7}], v{IDX}'
def emit(A,x):
    if x is None: return
    if callable(x): x()
    else: A(x)
def weave(A, mains, fills, per):
    fills=list(fills)
    for n,m in enumerate(mains):
        emit(A,m)
        k = per[n] if isinstance(per,(list,tuple)) else per
        for _ in range(k):
            if fills: emit(A,fills.pop(0))
    return fills

VST=VXF+6
def export_list(exsc, tmp):
    if CFG['NO_EXPORT']: return []
    WSR=f's[{SRD_WS}:{SRD_WS+3}]'
    return [f's_add_u32 s{S_T+3}, s{S_KVM}, {KM_OFF-L_B0}',
            f'buffer_store_dwordx4 v[{KMF}:{KMF+3}], v{LK}, {WSR}, s{S_T+3} offen{exsc}',
            f's_lshr_b32 s{S_T+3}, s{S_KVM}, 1',
            f's_add_u32 s{S_T+3}, s{S_T+3}, {VM_OFF-L_B0//2}',
            f'buffer_store_dwordx2 v[{VST}:{VST+1}], v{tmp}, {WSR}, s{S_T+3} offen{exsc}']
def stash(A):
    A(f'v_mov_b32 v{VST}, v{VACC}')
    A(f'v_alignbit_b32 v{VST+1}, v{VACC+4}, v{VACC+4}, 16')

def tagacc(p, acc, first, d0, d2):
    if p==0:
        return f'v_or_b32 v{acc}, v{d0}, v{d2}' if first else f'v_or3_b32 v{acc}, v{acc}, v{d0}, v{d2}'
    return f'v_and_b32 v{acc}, v{d0}, v{d2}' if first else f'v_bitop3_b32 v{acc}, v{acc}, v{d0}, v{d2} bitop3:0x80'
def tagcmp(A, p, acc):
    A(f'v_and_b32 v{acc}, 1, v{acc}')
    A(f'v_cmp_ne_u32 vcc, {p}, v{acc}')
def tagset(p, r):
    return f'v_and_b32 v{r}, -2, v{r}' if p==0 else f'v_or_b32 v{r}, 1, v{r}'

def mem_dma(A, lms):
    WSR=f's[{SRD_WS}:{SRD_WS+3}]'
    A(f'v_lshlrev_b32 v{T1}, 4, v{LK}')
    A('s_mov_b32 exec_hi, 0')
    A(f'buffer_load_dword v{T0}, v{T1}, {WSR}, s{S_M3} offen offset:248 sc1')
    A('s_mov_b32 exec_hi, -1')
    A(f's_mov_b32 m0, {lms}')
    for j in range(4): A(f'buffer_load_dwordx4 v{LK}, {WSR}, s{S_M1} offen offset:{j*1024} sc1 lds', tag='md')
    A(f's_mov_b32 m0, {lms+4096}')
    for j in range(4): A(f'buffer_load_dwordx4 v{LK}, {WSR}, s{S_M2} offen offset:{j*1024} sc1 lds', tag='md')

def chain_loop(A, st, exsc, nsteps=64, dbg=True, delayA=0, delayB=0, exsleep=2, flags=False, ldsc=None):
    if ldsc is None: ldsc=exsc
    WSR=f's[{SRD_WS}:{SRD_WS+3}]'
    NH=CFG['NO_HOPS']
    Lend=A.newlabel('Lend')
    Ltop=[A.newlabel('Ltop0'),A.newlabel('Ltop1')]
    Lmd=[A.newlabel('Lmd0'),A.newlabel('Lmd1')]
    tails=[]; ftails=[]
    P0=VXF; P1=VXF+1; P2=VXF+2; P3=VXF+3; AX=VXF
    DPP='row_ror:8 row_mask:0xf bank_mask:0xf'
    def zero_qk():
        for r in range(QACC,KACC+8): A(f'v_mov_b32 v{r}, 0')
    def zero_v():
        for r in range(VACC,VACC+8): A(f'v_mov_b32 v{r}, 0')
    def preaddr():
        A(f'''
        v_mov_b32 v{P2}, s{S_TRX}
        v_cndmask_b32 v{P0}, v{TRL}, v{P2}, s[{S_CGE2}:{S_CGE2+1}]
        v_cndmask_b32 v{P1}, v{P2}, v{TRL}, s[{S_CGE2}:{S_CGE2+1}]
        v_lshlrev_b32 v{P2}, 1, v{EXQ}
        v_add_u32 v{P2}, {L_KS-2*L_QS}, v{P2}
        v_lshrrev_b32 v{P3}, 1, v{LK}
        v_mov_b32 v{BL}, v{P3}
        v_add_u32 v{P3}, s{S_KSW}, v{P3}
        s_max_i32 s{S_T}, s{S_STEP}, 1
        s_sub_u32 s{S_T}, s{S_T}, 1
        v_mov_b32 v{BL+1}, s{S_T}
        ''')
    def vxdma(lds):
        if CFG['NO_DMA']: return []
        return [f's_add_u32 m0, s{S_XW}, {lds}', f's_add_u32 s{S_T}, s{S_KVX}, {VX_OFF-L_B0}',
                f'buffer_load_dwordx4 v{LK}, {WSR}, s{S_T} offen{ldsc} lds',
                f's_add_u32 m0, s{S_XW}, {lds+3072}',
                f'buffer_load_dwordx4 v{LK}, {WSR}, s{S_T} offen offset:1024{ldsc} lds']
    def kxld():
        if CFG['NO_DMA']: return []
        return [f's_add_u32 s{S_T}, s{S_KVX}, {KX_OFF-L_B0}',
                f'buffer_load_dwordx4 v[{KXF}:{KXF+3}], v{LK}, {WSR}, s{S_T} offen{ldsc}',
                f'buffer_load_dwordx4 v[{KXF+4}:{KXF+7}], v{LK}, {WSR}, s{S_T} offen offset:1024{ldsc}']
    def adv():
        A(f's_lshr_b32 s{S_KVM}, s{S_KVX}, 1\ns_add_u32 s{S_KVX}, s{S_KVX}, {32*8192}')
    A(f'''
    s_mov_b32 s{S_STEP}, 0
    s_lshl_b32 s{S_KVX}, s{S_H}, 13
    s_add_u32 s{S_KVX}, s{S_KVX}, s{S_W2K}
    s_mov_b32 s{S_KVM}, {128*MiB}
    ''')
    def flagwait(lab_back=None):
        L=A.newlabel('Lfw'); L2=A.newlabel('Lfw2')
        A.label(L)
        A.reset_queues()
        A(f'buffer_load_dword v{FLG}, off, {WSR}, s{S_FA} sc1')
        A('s_waitcnt vmcnt(0)')
        A(f'v_cmp_eq_u32 vcc, 0, v{FLG}')
        A(f's_add_u32 s{S_RETRY}, s{S_RETRY}, 1')
        A(f's_cmp_gt_u32 s{S_RETRY}, {MAXRETRY*100}')
        A.branch(f's_cbranch_scc1 {L2}', fence=False)
        A('s_sleep 2')
        A.branch(f's_cbranch_vccnz {L}', fence=False)
        A.label(L2)
    if flags:
        A(f's_lshl_b32 s{S_FA}, s{S_H}, 2\ns_add_u32 s{S_FA}, s{S_FA}, {F1_OFF}')
        A(f's_lshl_b32 s{S_PF}, s{S_H}, 7\ns_add_u32 s{S_PF}, s{S_PF}, {F3_OFF}')
        flagwait()
    sv=CFG['NO_DMA']; CFG['NO_DMA']=False
    for x in kxld()+vxdma(L_B0): A(x)
    if sv:
        for x in vxdma(L_B1): A(x)
    CFG['NO_DMA']=sv
    for i in range(4):
        for x in buf_ld(i,i): A(x)
    zero_qk(); zero_v(); preaddr()
    A('s_waitcnt vmcnt(0) lgkmcnt(0)')
    A.branch(f's_branch {Ltop[0]}')
    for p in range(2):
        LMS = L_B1 if p==0 else L_B0
        LVX = L_B0 if p==0 else L_B1
        Lfail=A.newlabel('Lfail'); Lq=A.newlabel('Lq'); Lqok=A.newlabel('Lqok'); Lw0=A.newlabel('Lw0')
        Lpr=A.newlabel('Lpr')
        A.label(Lmd[p])
        A.reset_queues()
        CFG['_p']=1-p
        mark(A,'md0')
        idle(A,delayA)
        mem_dma(A,LMS)
        mark(A,'md1')
        preaddr()
        A('s_mov_b32 exec_hi, 0')
        tagcmp(A,p,T0)
        A('s_mov_b32 exec_hi, -1')
        if not NH: A.branch(f's_cbranch_vccnz {Lpr}', fence=False)
        mark(A,'md2')
        A.wait_vm_tag('md')
        A.label(Ltop[p], fence=False)
        A.reset_queues()
        A('s_waitcnt lgkmcnt(0)')
        mark(A,'md3')
        A('s_barrier')
        mark_acc(A)
        CFG['_p']=p
        mark(A,'q0')
        A.label(Lq, fence=False)
        for f in range(8): A(f'ds_read_b128 v[{MEMF+4*f}:{MEMF+4*f+3}], v{LK} offset:{LMS-L_B0+f*1024}')
        qs=[smf(QACC+4*j, MEMF+4*f, 'a', (j*8+f)*8) for f in range(8) for j in range(2)]
        chk=[tagacc(p,T0,f==0,MEMF+4*f,MEMF+4*f+2) for f in range(8)]
        ex_=export_list(exsc,BL)
        pre=[None,None]+(ex_[:2]+[None]+ex_[2:] if ex_ else [None]*6)
        pre+= [None, f'buffer_store_dword v{BL+1}, off, {WSR}, s{S_PF} sc1' if flags else None, adv]
        weave(A, qs, pre+chk, [1,1,2,1,3,1,1,1]+[1]*8)
        mark(A,'k0')
        def exch(acc, addr, stride):
            return [f'v_add_f32 v{acc}, v{acc}, v{acc+1}', f'v_add_f32 v{acc+2}, v{acc+2}, v{acc+3}',
                    f'v_add_f32 v{acc+4}, v{acc+4}, v{acc+5}', f'v_add_f32 v{acc+6}, v{acc+6}, v{acc+7}',
                    f'v_cvt_pk_bf16_f32 v{acc}, v{acc}, v{acc+2}', f'v_cvt_pk_bf16_f32 v{acc+4}, v{acc+4}, v{acc+6}',
                    f'ds_write2_b32 v{addr}, v{acc}, v{acc+4} offset0:0 offset1:{stride}']
        def wb():
            A.wait_ds_writes(); A('s_barrier')
        def chkbr():
            if not NH: A.branch(f's_cbranch_vccnz {Lfail}', fence=False)
            A.label(Lqok, fence=False)
        SXA=QACC; SM=KACC
        K=[smf(KACC+4*j, MEMF+4*f, 'a', 128+(j*8+f)*8) for f in range(8) for j in range(2)]
        qe=exch(QACC,EXQ,64)
        SXo=L_SX-L_B0
        A(K[0]); A(f'v_and_b32 v{T0}, 1, v{T0}')
        A(K[1]); A(f'v_cmp_ne_u32 vcc, {p}, v{T0}')
        for n in range(6): A(K[2+n]); A(qe[n])
        A(K[8]); A(qe[6]); A(f'ds_read_b64_tr_b16 v[{BL}:{BL+1}], v{P0}')
        A(K[9]); A(f'ds_read_b64_tr_b16 v[{BL+2}:{BL+3}], v{P0} offset:256'); A(f'ds_read_b64_tr_b16 v[{BH}:{BH+1}], v{P1}')
        A(K[10]); A(f'ds_read_b64_tr_b16 v[{BH+2}:{BH+3}], v{P1} offset:256'); chkbr()
        A(K[11]); A(f'v_add_u32 v{AX}, s{S_XW}, v{LK}')
        A(K[12])
        Lfl=A.newlabel('Lfl'); Lflb=A.newlabel('Lflb')
        if flags: A(f'v_cmp_eq_u32 vcc, 0, v{FLG}')
        A(f'v_mfma_f32_16x16x32_bf16 v[{SXA}:{SXA+3}], v[{KXF}:{KXF+3}], v[{BL}:{BL+3}], 0')
        A(f'v_mfma_f32_16x16x32_bf16 v[{SXA}:{SXA+3}], v[{KXF+4}:{KXF+7}], v[{BH}:{BH+3}], v[{SXA}:{SXA+3}]')
        kl=kxld()
        if flags:
            A.branch(f's_cbranch_vccnz {Lfl}', fence=False)
            A.label(Lflb, fence=False)
            ftails.append((Lfl,Lflb))
        A(K[13]); [A(x) for x in kl[:2]]
        A(K[14]); [A(x) for x in kl[2:]]
        if flags:
            A(f's_add_u32 s{S_T}, s{S_STEP}, 2\ns_min_u32 s{S_T}, s{S_T}, 63\ns_lshr_b32 s{S_T}, s{S_T}, 2\ns_lshl_b32 s{S_T}, s{S_T}, 5\ns_add_u32 s{S_T}, s{S_T}, s{S_H}\ns_lshl_b32 s{S_T}, s{S_T}, 2\ns_add_u32 s{S_FA}, s{S_T}, {F1_OFF}')
        A(K[15])
        if flags: A(f'buffer_load_dword v{FLG}, off, {WSR}, s{S_FA} sc1')
        A(f'ds_write_b128 v{AX}, v[{SXA}:{SXA+3}] offset:{SXo}')
        mark(A,'s0')
        vseq=[]
        for i in range(4): vseq+= [('L',i),('R',i)]
        vseq+= [('R',i) for i in range(4,8)] + [('L',i) for i in range(4,8)]
        vi=[0]; pendld=[]
        def vnext(n=1, ld=True):
            for _ in range(n):
                k,i=vseq[vi[0]]; vi[0]+=1
                if k=='R': A(smf(VACC,MEMF+4*i,'v',WV+8*i))
                else:
                    A(smf(VACC+4,MEMF+4*i,'v',BUF+8*(i%4)))
                    pendld.extend(buf_ld(i,i+4) if i<4 else buf_ld(i%4,8+(i%4)))
                if ld and pendld: A(pendld.pop(0))
        vnext(1,False)
        A(f'ds_write_b128 v{AX}, v[{SXA}:{SXA+3}] offset:{SXo+4096}')
        vnext(1,False)
        ke=exch(KACC,P2,128)
        for x in ke[:4]: A(x)
        vnext(1,False)
        for x in ke[4:]: A(x)
        A(f'ds_read_b64_tr_b16 v[{KMF}:{KMF+1}], v{P3}')
        A(f'ds_read_b64_tr_b16 v[{KMF+2}:{KMF+3}], v{P3} offset:512')
        fill(A,'bx_pre')
        A('s_waitcnt lgkmcnt(3)')
        A('s_barrier')
        mark(A,'b2')
        XP=[QACC+4, KACC+4, VXF+4]
        for n in range(3): A(f'ds_read_b128 v[{XP[n]}:{XP[n]+3}], v{AX} offset:{SXo+1024*(n+1)}')
        vd=vxdma(LMS)
        vnext(1)
        for x in vd[:3]: A(x)
        vnext(1)
        for x in vd[3:]: A(x)
        fill(A,'bx_post')
        A(f'v_mfma_f32_16x16x32_bf16 v[{SM}:{SM+3}], v[{KMF}:{KMF+3}], v[{BL}:{BL+3}], 0')
        A(f'v_add_u32 v{T1}, s{S_SMW}, v{LK}')
        A(f'v_mfma_f32_16x16x32_bf16 v[{SM}:{SM+3}], v[{KMF}:{KMF+3}], v[{BH}:{BH+3}], v[{SM}:{SM+3}]')
        xa=[f'v_add_f32 v{SXA+r}, v{SXA+r}, v{XP[0]+r}' for r in range(4)] + [f'v_add_f32 v{XP[1]+r}, v{XP[1]+r}, v{XP[2]+r}' for r in range(4)] + [f'v_add_f32 v{SXA+r}, v{SXA+r}, v{XP[1]+r}' for r in range(4)]
        A(xa[0]); A(xa[1])
        vnext(1); A(xa[2])
        vnext(1);
        A(f'v_cndmask_b32 v{SM}, v{SM}, v{SM+1}, s[{S_HI8}:{S_HI8+1}]')
        A(f'ds_write_b32 v{T1}, v{SM} offset:{L_SM-L_B0}')
        mark(A,'sm')
        A(xa[3]); A(xa[4])
        vnext(1); A(xa[5]); A(xa[6])
        vnext(1); A(xa[7]); A(xa[8])
        vnext(1); A(xa[9]); A(xa[10]); A(xa[11])
        fill(A,'bm_pre')
        wb()
        mark(A,'bm')
        MP=KACC+4
        A(f'ds_read_b128 v[{MP}:{MP+3}], v{LK} offset:{L_SM-L_B0}')
        A(f'v_max3_f32 v{T0}, v{SXA}, v{SXA+1}, v{SXA+2}')
        vnext(1,False)
        A(f'ds_read_b64 v[{VXF+6}:{VXF+7}], v{AX} offset:{LVX-L_B0+4096}')
        A(f'ds_read_b64 v[{VXF+4}:{VXF+5}], v{AX} offset:{LVX-L_B0+4096+8}')
        A(f'ds_read_b128 v[{VXF}:{VXF+3}], v{AX} offset:{LVX-L_B0}')
        vnext(1)
        vnext(1)
        fill(A,'bm_post')
        A(f'v_add_f32 v{MP}, v{MP}, v{MP+1}')
        A(f'v_add_f32 v{MP+2}, v{MP+2}, v{MP+3}')
        A(f'v_add_f32 v{SM}, v{MP}, v{MP+2}')
        A(f'v_max3_f32 v{T0}, v{T0}, v{SXA+3}, v{SM}')
        vnext(1)
        A(f'v_max_f32_dpp v{T0}, v{T0}, v{T0} {DPP}')
        A(f'v_mov_b32 v{T1}, v{T0}')
        vnext(1)
        A(f'v_permlane32_swap_b32 v{T0}, v{T1}')
        A(f'v_max_f32 v{T0}, v{T0}, v{T1}')
        A(f'v_mov_b32 v{T1}, v{T0}')
        vnext(1)
        assert vi[0]==16
        A(f'v_permlane16_swap_b32 v{T0}, v{T1}')
        A(f'v_max_f32 v{T0}, v{T0}, v{T1}')
        A(f'v_mul_f32 v{T0}, s{S_C}, v{T0}')
        mark(A,'mx')
        PB=KACC+4; PM=KACC+2; OA=BL; OB=BH
        def fm(r): A(f'v_fma_f32 v{r}, v{r}, s{S_C}, -v{T0}')
        def ex(r): A(f'v_exp_f32 v{r}, v{r}')
        for r in range(4): fm(SXA+r)
        ex(SXA); ex(SXA+1)
        fm(SM)
        ex(SXA+2)
        A(f'v_cvt_pk_bf16_f32 v{PB}, v{SXA}, v{SXA+1}')
        ex(SXA+3)
        ex(SM)
        A(f'v_cvt_pk_bf16_f32 v{PB+1}, v{SXA+2}, v{SXA+3}')
        A(f'v_mov_b32_dpp v{PB+2}, v{PB} {DPP}')
        A(f'v_add_f32 v{VACC}, v{VACC}, v{VACC+1}')
        A(f'v_mov_b32_dpp v{PB+3}, v{PB+1} {DPP}')
        A(f'v_mov_b32_dpp v{SM+1}, v{SM} {DPP}')
        A(f'v_add_f32 v{VACC+2}, v{VACC+2}, v{VACC+3}')
        mark(A,'ex')
        A(f'v_mfma_f32_16x16x32_bf16 v[{OA}:{OA+3}], v[{VXF}:{VXF+3}], v[{PB}:{PB+3}], 0')
        A(f'v_cvt_pk_bf16_f32 v{PM}, v{SM}, v{SM+1}')
        A(f'v_mov_b32 v{PM+1}, 0')
        A(f'v_mfma_f32_16x16x32_bf16 v[{OB}:{OB+3}], v[{VXF+4}:{VXF+7}], v[{PB}:{PB+3}], 0')
        A(f'v_cvt_pk_bf16_f32 v{VACC}, v{VACC}, v{VACC+2}')
        A(f'v_mov_b32 v{VACC+1}, 0')
        A(f'v_add_f32 v{VACC+4}, v{VACC+4}, v{VACC+5}')
        A(f'v_add_f32 v{VACC+6}, v{VACC+6}, v{VACC+7}')
        A(f'v_mfma_f32_16x16x16_bf16 v[{OA}:{OA+3}], v[{VACC}:{VACC+1}], v[{PM}:{PM+1}], v[{OA}:{OA+3}]')
        A(f'v_cvt_pk_bf16_f32 v{VACC+4}, v{VACC+6}, v{VACC+4}')
        A(f'v_mov_b32 v{VACC+5}, 0')
        A(f'v_add_f32 v{SXA}, v{SXA}, v{SXA+1}')
        A(f'v_add_f32 v{SXA+2}, v{SXA+2}, v{SXA+3}')
        A(f'v_mfma_f32_16x16x16_bf16 v[{OB}:{OB+3}], v[{VACC+4}:{VACC+5}], v[{PM}:{PM+1}], v[{OB}:{OB+3}]')
        A(f'v_add_f32 v{SXA}, v{SXA}, v{SM}')
        A(f'v_add_f32 v{T0}, v{SXA}, v{SXA+2}')
        if p==1: A(f's_cmp_eq_u32 s{S_STEP}, {nsteps-1}')
        for x in pendld[:1]: A(x)
        del pendld[:1]
        A(f'v_mov_b32 v{MEMF}, 0')
        A(f'v_add_f32_dpp v{T0}, v{T0}, v{T0} {DPP}')
        A(f'v_mov_b32 v{T1}, v{T0}')
        A(f'v_mov_b32 v{MEMF+1}, 0')
        A(f'v_mov_b32 v{MEMF+2}, 0')
        A(f'v_permlane32_swap_b32 v{T0}, v{T1}')
        A(f'v_add_f32 v{T0}, v{T0}, v{T1}')
        A(f'v_mov_b32 v{T1}, v{T0}')
        A(f'v_cndmask_b32 v{OA}, v{OA}, v{OB}, s[{S_HI8}:{S_HI8+1}]')
        A(f'v_cndmask_b32 v{OA+1}, v{OA+1}, v{OB+1}, s[{S_HI8}:{S_HI8+1}]')
        A(f'v_permlane16_swap_b32 v{T0}, v{T1}')
        A(f'v_add_f32 v{T0}, v{T0}, v{T1}')
        A(f'v_rcp_f32 v{T0}, v{T0}')
        A(f'v_cndmask_b32 v{OA+2}, v{OA+2}, v{OB+2}, s[{S_HI8}:{S_HI8+1}]')
        A(f'v_cndmask_b32 v{OA+3}, v{OA+3}, v{OB+3}, s[{S_HI8}:{S_HI8+1}]')
        if p==1: A.branch(f's_cbranch_scc1 {Lend}', fence=False)
        mark(A,'pv')
        for r in range(4): A(f'v_mul_f32 v{OA+r}, v{OA+r}, v{T0}')
        OP=QACC
        A(f'v_cvt_pk_bf16_f32 v{OP}, v{OA}, v{OA+1}')
        A(f'v_cvt_pk_bf16_f32 v{OP+1}, v{OA+2}, v{OA+3}')
        A(f'ds_write_b64 v{OW}, v[{OP}:{OP+1}]')
        stash(A)
        for r in range(3,16): A(f'v_mov_b32 v{MEMF+r}, 0')
        fill(A,'b3_pre')
        wb()
        mark(A,'b3')
        OF=BL
        A(f'ds_read_b128 v[{OF}:{OF+3}], v{OR}')
        A(f'ds_read_b128 v[{OF+4}:{OF+7}], v{OR} offset:1024')
        for x in pendld: A(x)
        del pendld[:]
        for r in range(16,28): A(f'v_mov_b32 v{MEMF+r}, 0')
        fill(A,'b3_post')
        def epi(pp):
            xa=MEMF+8*pp; tmp=QACC+2*pp
            return [f'v_add_f32 v{xa}, v{xa}, v{xa+1}', f'v_add_f32 v{xa+2}, v{xa+2}, v{xa+3}',
                    f'v_add_f32 v{xa+4}, v{xa+4}, v{xa+5}', f'v_add_f32 v{xa+6}, v{xa+6}, v{xa+7}',
                    f'v_cvt_pk_bf16_f32 v{tmp}, v{xa}, v{xa+2}', f'v_cvt_pk_bf16_f32 v{tmp+1}, v{xa+4}, v{xa+6}',
                    tagset(p,tmp),
                    f'buffer_store_dwordx2 v[{tmp}:{tmp+1}], v{PST}, {WSR}, s{S_PW+pp} offen{st}']
        def W(t,F):
            if t<4: return smf(MEMF+4*t,OF+4*F,'v',WO+(t*2+F)*8)
            li=(t-4)*2+F
            return smf(MEMF+4*t,OF+4*F,'v',BUF+8*(li%4))
        z=[f'v_mov_b32 v{MEMF+r}, 0' for r in range(28,32)]
        r0=buf_ld(0,12); r2=buf_ld(2,14); r1=buf_ld(1,13); r3=buf_ld(3,15)
        A(W(4,0)); A(r0[0])
        A(W(0,0)); A(r0[1])
        A(W(5,0)); A(r2[0])
        A(W(1,0)); A(r2[1])
        A(W(4,1)); A(r1[0])
        A(W(5,1)); A(r1[1])
        A(W(0,1)); A(r3[0])
        A(W(1,1)); A(r3[1])
        e2=epi(2); e0=epi(0); e1=epi(1); e3=epi(3)
        fl=z+e2+e0
        seq=[W(2,0),W(3,0),W(2,1),W(3,1),W(6,0),W(7,0),W(6,1),W(7,1)]
        rest=weave(A, seq, fl+e1, [3,3,3,3,3,3,3,3])
        mark(A,'wo')
        for x in rest: A(x)
        A(f's_add_u32 s{S_STEP}, s{S_STEP}, 1')
        A(f's_cmp_eq_u32 s{S_W}, 0')
        for x in e3: A(x)
        mark(A,'st')
        A.branch(f's_cbranch_scc1 {Lw0}', fence=False)
        sv=(list(A.lq),list(A.vq),set(A.smem))
        for i in range(4):
            for x in buf_ld(i,i): A(x)
        zero_qk(); zero_v(); preaddr()
        A('s_waitcnt vmcnt(0)')
        A.branch(f's_branch {Ltop[1-p]}')
        A.label(Lw0)
        A.lq,A.vq,A.smem=sv
        idle(A,delayB)
        Lg0=A.newlabel('Lg0'); Lgr=A.newlabel('Lgr'); Lgo=A.newlabel('Lgo')
        gld=[f'buffer_load_dwordx4 v[{MEMF+4*t}:{MEMF+4*t+3}], v{LK}, {WSR}, s{S_GL1 if t<4 else S_GL2} offen offset:{(t%4)*1024} sc1' for t in range(8)]
        for x in gld: A(x)
        mark(A,'g1')
        for i in range(4):
            for x in buf_ld(i,i): A(x)
        SEL=BL; RA=BH; RO=VXF+4
        A(f'''
        v_and_b32 v{T0}, 16, v{LK}
        v_mov_b32 v{T1}, 0x3f80
        v_lshlrev_b32 v{T0}, v{T0}, v{T1}
        ''')
        for j in range(4): A(f'v_cndmask_b32 v{SEL+j}, 0, v{T0}, s[{S_SEL+2*j}:{S_SEL+2*j+1}]')
        zero_qk(); zero_v()
        A.label(Lg0, fence=False)
        for t in range(8):
            m=MEMF+4*t
            c='0' if t==0 else f'v[{RA}:{RA+3}]'
            A(f'v_mfma_f32_16x16x32_bf16 v[{RA}:{RA+3}], v[{m}:{m+3}], v[{SEL}:{SEL+3}], {c}')
            A(tagacc(p,T0,t==0,m,m+2))
            if t==0: mark(A,'g2')
        tagcmp(A,p,T0)
        if not NH: A.branch(f's_cbranch_vccnz {Lgr}', fence=False)
        A.label(Lgo, fence=False)
        mark(A,'g3')
        A(f'v_cvt_pk_bf16_f32 v{RO}, v{RA}, v{RA+1}')
        A(f'v_cvt_pk_bf16_f32 v{RO+1}, v{RA+2}, v{RA+3}')
        A(tagset(1-p,RO))
        A(f'buffer_store_dwordx2 v[{RO}:{RO+1}], v{MST}, {WSR}, s{S_MEMW} offen{st}')
        if dbg:
            A(f'''
            s_lshl_b32 s{S_T}, s{S_STEP}, 13
            s_lshl_b32 s{S_T+2}, s{S_H}, 8
            s_add_u32 s{S_T}, s{S_T}, s{S_T+2}
            s_add_u32 s{S_T}, s{S_T}, {MH_OFF}
            buffer_store_dwordx2 v[{RO}:{RO+1}], v{MST}, {WSR}, s{S_T} offen
            ''')
        if p==1: A.branch(f's_branch {Lmd[0]}', fence=False)
        tails.append((p,LMS,Lgr,Lg0,Lgo,gld,Lpr,Lfail,Lqok,Lq))
    for (p,LMS,Lgr,Lg0,Lgo,gld,Lpr,Lfail,Lqok,Lq) in tails:
        A.label(Lgr)
        A.reset_queues()
        A(f's_add_u32 s{S_RETRY}, s{S_RETRY}, 1')
        A(f's_cmp_gt_u32 s{S_RETRY}, {MAXRETRY*100}')
        A.branch(f's_cbranch_scc1 {Lgo}', fence=False)
        A.auto=False
        for ld in gld: A(ld)
        A.auto=True
        A.branch(f's_branch {Lg0}')
        A.label(Lpr)
        A.reset_queues()
        Lp2=A.newlabel('Lp2')
        A(f's_add_u32 s{S_RETRY}, s{S_RETRY}, 0x100')
        A(f's_cmp_gt_u32 s{S_RETRY}, {MAXRETRY*100}')
        A.branch(f's_cbranch_scc1 {Lp2}', fence=False)
        mem_dma(A,LMS)
        A('s_mov_b32 exec_hi, 0')
        tagcmp(A,p,T0)
        A('s_mov_b32 exec_hi, -1')
        A.branch(f's_cbranch_vccnz {Lpr}', fence=False)
        A.label(Lp2)
        A('s_waitcnt vmcnt(0)')
        A.branch(f's_branch {Ltop[p]}')
        A.label(Lfail)
        A.reset_queues()
        A(f's_cmp_eq_u32 s{S_STEP}, 0')
        A.branch(f's_cbranch_scc1 {Lqok}', fence=False)
        A(f's_add_u32 s{S_RETRY}, s{S_RETRY}, 0x10000')
        A(f's_add_u32 s{S_FAIL}, s{S_FAIL}, 1')
        A(f's_cmp_gt_u32 s{S_FAIL}, {MAXRETRY}')
        A.branch(f's_cbranch_scc1 {Lqok}', fence=False)
        A('s_waitcnt lgkmcnt(0)\ns_barrier')
        Lf2=A.newlabel('Lf2')
        A(f's_sub_u32 s{S_KVX}, s{S_KVX}, {32*8192}')
        A(f's_mov_b32 s{S_KVM}, {128*MiB}')
        preaddr()
        A(f's_cmp_lg_u32 s{S_W}, 0')
        A.branch(f's_cbranch_scc1 {Lf2}')
        mem_dma(A,LMS)
        A.label(Lf2)
        A.reset_queues()
        for r in range(QACC,KACC+8): A(f'v_mov_b32 v{r}, 0')
        A('s_waitcnt vmcnt(0)\ns_barrier')
        A.branch(f's_branch {Lq}')
    for (Lfl,Lflb) in ftails:
        A.label(Lfl)
        flagwait()
        A.branch(f's_branch {Lflb}')
    A.label(Lend)
    A.reset_queues()
    A('s_waitcnt lgkmcnt(0)')
    stash(A)
    A(f'v_lshrrev_b32 v{T1}, 1, v{LK}')
    for x in export_list(exsc,T1): A(x)
    if flags:
        A('s_waitcnt vmcnt(0)\ns_barrier')
        A(f'v_mov_b32 v{T0}, 64')
        A(f'buffer_store_dword v{T0}, off, {WSR}, s{S_PF} sc1')
```

```python
MiB=1<<20
XN_OFF = 0
QX_OFF = 16*MiB
KX_OFF = 32*MiB
VX_OFF = 48*MiB
KM_OFF = 64*MiB
VM_OFF = 72*MiB
FF_OFF = 80*MiB
P_OFF  = 112*MiB
M_OFF  = 113*MiB
MH_OFF = 114*MiB
P2_OFF = 116*MiB
FL_OFF = 125*MiB
F1_OFF = FL_OFF
F2_OFF = FL_OFF+4096
F3_OFF = FL_OFF+8192
RC_OFF = FL_OFF+16384
TS_OFF = 126*MiB
WS_SIZE= 256*MiB
KA_X=0; KA_MEM0=8; KA_WQ=16; KA_WK=24; KA_WV=32; KA_WO=40; KA_WG=64; KA_WU=72; KA_WD=80; KA_OUT=88; KA_DBG=96; KA_WS=104
```

```python
from asmlib import *
from layout import *
S2_LDS=0x20000+0x4000+0x100
L_OE=0x20000; L_MISC=0x24000
QF=160; KX0=176; KX1=192; VX=208; KM=48; VM=80
VMP=84
SX0=92; SX1=96; SM=100; PB=104; PM=108; OA=112
OF=0
WA=32
PK=48
GA=64
CI=96
XR=124
L16=128; L8=129; OWA=130; GAD=131; SLA=132; XA=133; SEL=136; RA=140; T0=144; T1=145; NEG=146; ZR=147
S_W=3; S_H=4; S_IT=5; S_SEG=6; S_TEAM=7
SRD_WS=8; SRD_W=12; SRD_DBG=16; SRD_X=24; SRD_O=28
S_T=20
S_MASK=32
S_C=48; S_E=49; S_PB=50; S_RETRY=51; S_B8=52; S_B4=53; S_TQ=54; S_EH=55; S_GB=56; S_OEP=57; S_NB=58; S_PV=59
MAXRETRY=100000000
def srd(A, d, lo, size):
    A(f's_mov_b32 s{d}, s{lo}\ns_and_b32 s{d+1}, s{lo+1}, 0xffff\ns_mov_b32 s{d+2}, {size}\ns_mov_b32 s{d+3}, 0x20000')

def s2_setup(A, st):
    WSR=f's[{SRD_WS}:{SRD_WS+3}]'
    A(f'''
    s_load_dwordx2 s[60:61], s[0:1], {KA_WO}
    s_load_dwordx2 s[62:63], s[0:1], {KA_X}
    s_load_dwordx2 s[64:65], s[0:1], {KA_OUT}
    v_and_b32 v1, 63, v0
    v_and_b32 v2, 15, v1
    v_lshrrev_b32 v3, 4, v1
    v_lshlrev_b32 v{L16}, 4, v1
    v_lshlrev_b32 v{L8}, 3, v1
    s_and_b32 s{S_TQ}, s{S_W}, 1
    s_lshr_b32 s{S_EH}, s{S_W}, 1
    s_mov_b32 s{S_C}, 0x3e0293ee
    s_mov_b32 s{S_RETRY}, 0
    v_mov_b32 v{NEG}, 0xff800000
    v_mov_b32 v{ZR}, 0
    s_lshl_b32 s{S_T}, s{S_TQ}, 4
    v_add_u32 v4, s{S_T}, v2
    v_lshlrev_b32 v5, 2, v3
    ''')
    for tk in range(2):
        for r in range(4):
            A(f'v_add_u32 v6, {16*tk+r}, v5')
            A(f'v_cmp_gt_u32 s[{S_MASK+2*(tk*4+r)}:{S_MASK+2*(tk*4+r)+1}], v6, v4')
    A(f'''
    s_lshl_b32 s{S_T}, s{S_TQ}, 2
    s_lshl_b32 s{S_T+1}, s{S_EH}, 1
    s_add_u32 s{S_T}, s{S_T}, s{S_T+1}
    s_lshl_b32 s{S_T}, s{S_T}, 10
    s_add_u32 s{S_T}, s{S_T}, {L_OE}
    v_add_u32 v{OWA}, s{S_T}, v{L16}
    v_lshlrev_b32 v4, 10, v3
    v_lshl_add_u32 v4, v2, 4, v4
    s_lshl_b32 s{S_T}, s{S_W}, 8
    v_add_u32 v{GAD}, s{S_T}, v4
    v_bfe_u32 v4, v2, 2, 1               ; tt
    v_and_b32 v5, 3, v2
    s_lshl_b32 s{S_T}, s{S_W}, 2
    v_add_u32 v5, s{S_T}, v5             ; t15
    v_lshl_add_u32 v6, v3, 4, v5
    v_lshlrev_b32 v6, 4, v6
    v_lshl_add_u32 v{SLA}, v4, 10, v6
    v_lshl_add_u32 v6, v4, 4, v5
    v_lshlrev_b32 v6, 10, v6
    v_lshl_add_u32 v6, v3, 3, v6
    s_lshl_b32 s{S_T}, s{S_H}, 5
    v_add_u32 v{XA}, s{S_T}, v6
    v_and_b32 v4, 1, v2
    v_lshlrev_b32 v4, 4, v4
    v_mov_b32 v5, 0x3f80
    v_lshlrev_b32 v4, v4, v5
    v_bfe_u32 v5, v2, 1, 2
    ''')
    for j in range(4):
        A(f'v_cmp_eq_u32 vcc, {j}, v5')
        A(f'v_cndmask_b32 v{SEL+j}, 0, v4, vcc')
    A('s_waitcnt lgkmcnt(0)')
    srd(A,SRD_W,60,4*MiB); srd(A,SRD_X,62,2*MiB); srd(A,SRD_O,64,2*MiB)
    A(f'''
    s_lshl_b32 s{S_PB}, s{S_TEAM}, 21
    s_add_u32 s{S_PB}, s{S_PB}, {P2_OFF}
    v_mov_b32 v4, -1
    v_mov_b32 v5, -1
    v_mov_b32 v6, -1
    v_mov_b32 v7, -1
    v_lshlrev_b32 v8, 4, v0
    s_lshl_b32 s{S_T}, s{S_H}, 15
    s_add_u32 s{S_T}, s{S_T}, s{S_PB}
    ''')
    for slot in range(2):
        for i in range(8):
            A(f's_add_u32 s{S_T+1}, s{S_T}, {slot*MiB+i*4096}')
            A(f'buffer_store_dwordx4 v[4:7], v8, {WSR}, s{S_T+1} offen{st}')
    A(f'''
    v_lshlrev_b32 v9, 1, v3
    v_xor_b32 v9, v9, v2
    v_lshlrev_b32 v9, 4, v9
    v_lshl_add_u32 v9, v3, 10, v9
    s_lshl_b32 s{S_T}, s{S_W}, 8
    v_add_u32 v9, s{S_T}, v9
    v_xor_b32 v10, 128, v9
    s_lshl_b32 s{S_T+2}, s{S_W}, 15
    s_lshl_b32 s{S_T+3}, s{S_H}, 17
    ''')
    for n in range(32):
        A(f's_add_u32 m0, s{S_T+2}, {n*1024}')
        A(f's_add_u32 s{S_T}, s{S_T+3}, {n*4096}')
        A(f'buffer_load_dwordx4 v{9+(n&1)}, s[{SRD_W}:{SRD_W+3}], s{S_T} offen lds')
    A(f'''
    v_bfe_u32 v11, v1, 2, 2
    v_lshl_add_u32 v12, v3, 2, v11
    v_lshlrev_b32 v12, 8, v12
    v_and_b32 v13, 3, v1
    v_lshl_add_u32 v12, v13, 3, v12
    v_and_b32 v13, 1, v3
    v_lshl_add_u32 v11, v13, 2, v11
    v_lshl_add_u32 v12, v11, 5, v12
    v_add_u32 v12, s{S_T+2}, v12
    s_waitcnt vmcnt(0)
    ''')
    for c in range(8):
        A(f'v_xor_b32 v13, {c*32}, v12')
        for ks in range(4):
            for u in range(2):
                b=(c*4+ks)*4+2*u
                A(f'ds_read_b64_tr_b16 a[{b}:{b+1}], v13 offset:{ks*8192+u*4096}')
    A('s_waitcnt lgkmcnt(0)')
    A.reset_queues()

def poll(A, saddr, cmp, val, sleep=2):
    WSR=f's[{SRD_WS}:{SRD_WS+3}]'
    L=A.newlabel('Lpl'); L2=A.newlabel('Lpd')
    A.label(L)
    A.reset_queues()
    A(f'buffer_load_dword v{T0}, off, {WSR}, s{saddr} sc1')
    A('s_waitcnt vmcnt(0)')
    A(f'v_readfirstlane_b32 s{S_PV}, v{T0}')
    A(f's_cmp_{cmp}_u32 s{S_PV}, {val}')
    A.branch(f's_cbranch_scc1 {L2}', fence=False)
    A(f's_add_u32 s{S_RETRY}, s{S_RETRY}, 1\ns_cmp_gt_u32 s{S_RETRY}, {MAXRETRY}')
    A.branch(f's_cbranch_scc1 {L2}', fence=False)
    A(f's_sleep {sleep}')
    A.branch(f's_branch {L}', fence=False)
    A.label(L2)

def prefetch(A, sseg, ldm, flags):
    WSR=f's[{SRD_WS}:{SRD_WS+3}]'
    if flags:
        A(f's_lshr_b32 s{S_T}, s{sseg}, 2\ns_lshl_b32 s{S_T}, s{S_T}, 5\ns_add_u32 s{S_T}, s{S_T}, s{S_H}\ns_lshl_b32 s{S_T}, s{S_T}, 2\ns_add_u32 s{S_T}, s{S_T}, {F1_OFF}')
        poll(A,S_T,'ge',1)
    A(f'''
    s_lshl_b32 s{S_T}, s{sseg}, 5
    s_add_u32 s{S_T}, s{S_T}, s{S_H}
    s_lshl_b32 s{S_NB}, s{S_T}, 13
    s_lshl_b32 s{S_T+1}, s{S_TQ}, 10
    s_add_u32 s{S_T+1}, s{S_T+1}, s{S_NB}
    s_add_u32 s{S_T+1}, s{S_T+1}, {QX_OFF}
    s_add_u32 s{S_T+2}, s{S_T+1}, 4096
    ''')
    for ks in range(4):
        A(f'buffer_load_dwordx4 v[{QF+4*ks}:{QF+4*ks+3}], v{L16}, {WSR}, s{S_T+1+ks//2} offen offset:{(ks%2)*2048}{ldm}')
    A(f's_add_u32 s{S_T+1}, s{S_NB}, {KX_OFF}\ns_add_u32 s{S_T+2}, s{S_T+1}, 4096')
    for ks in range(4):
        A(f'buffer_load_dwordx4 v[{KX0+4*ks}:{KX0+4*ks+3}], v{L16}, {WSR}, s{S_T+1+ks//2} offen offset:{(ks%2)*2048}{ldm}')
        A(f'buffer_load_dwordx4 v[{KX1+4*ks}:{KX1+4*ks+3}], v{L16}, {WSR}, s{S_T+1+ks//2} offen offset:{(ks%2)*2048+1024}{ldm}')
    A(f's_lshl_b32 s{S_T+1}, s{S_EH}, 12\ns_add_u32 s{S_T+1}, s{S_T+1}, s{S_NB}\ns_add_u32 s{S_T+1}, s{S_T+1}, {VX_OFF}')
    for i in range(4): A(f'buffer_load_dwordx4 v[{VX+4*i}:{VX+4*i+3}], v{L16}, {WSR}, s{S_T+1} offen offset:{i*1024}{ldm}')

def s2_loop(A, st, ldm, nteams, flags=False):
    WSR=f's[{SRD_WS}:{SRD_WS+3}]'
    Ltop=A.newlabel('L2top'); Lgr=A.newlabel('L2gr'); Lg0=A.newlabel('L2g0'); Lgo=A.newlabel('L2go'); Lend=A.newlabel('L2end')
    A(f's_mov_b32 s{S_IT}, 0\ns_mov_b32 s{S_SEG}, s{S_TEAM}')
    prefetch(A,S_SEG,ldm,flags)
    A.label(Ltop)
    A.reset_queues()
    if flags:
        A(f's_lshl_b32 s{S_T}, s{S_H}, 7\ns_add_u32 s{S_T}, s{S_T}, {F3_OFF}\ns_add_u32 s{S_T+1}, s{S_SEG}, 1')
        poll(A,S_T,'ge',f's{S_T+1}')
    else:
        A('s_waitcnt vmcnt(0)')
    A(f'''
    s_lshl_b32 s{S_T}, s{S_SEG}, 5
    s_add_u32 s{S_T}, s{S_T}, s{S_H}
    s_lshl_b32 s{S_B4}, s{S_T}, 12
    s_add_u32 s{S_T+3}, s{S_B4}, {KM_OFF}
    ''')
    for ks in range(4):
        A(f'buffer_load_dwordx4 v[{KM+4*ks}:{KM+4*ks+3}], v{L16}, {WSR}, s{S_T+3} offen offset:{ks*1024}{ldm}')
    A(f'''
    s_lshr_b32 s{S_T+2}, s{S_B4}, 1
    s_lshl_b32 s{S_T+3}, s{S_EH}, 10
    s_add_u32 s{S_T+2}, s{S_T+2}, s{S_T+3}
    s_add_u32 s{S_T+2}, s{S_T+2}, {VM_OFF}
    ''')
    A(f'buffer_load_dwordx2 v[{VM}:{VM+1}], v{L8}, {WSR}, s{S_T+2} offen{ldm}')
    A(f'buffer_load_dwordx2 v[{VM+2}:{VM+3}], v{L8}, {WSR}, s{S_T+2} offen offset:512{ldm}')
    A(f'''
    s_lshr_b32 s{S_E}, s{S_IT}, 1
    s_and_b32 s{S_E}, s{S_E}, 1
    s_and_b32 s{S_T}, s{S_IT}, 1
    s_lshl_b32 s{S_OEP}, s{S_T}, 13
    s_lshl_b32 s{S_T}, s{S_T}, 20
    s_add_u32 s{S_GB}, s{S_T}, s{S_PB}
    ''')
    for (acc,src) in ((SX0,KX0),(SX1,KX1),(SM,KM)):
        for ks in range(4):
            c='0' if ks==0 else f'v[{acc}:{acc+3}]'
            A(f'v_mfma_f32_16x16x32_bf16 v[{acc}:{acc+3}], v[{src+4*ks}:{src+4*ks+3}], v[{QF+4*ks}:{QF+4*ks+3}], {c}')
    for i in range(8): A(f'v_cndmask_b32 v{SX0+i}, v{SX0+i}, v{NEG}, s[{S_MASK+2*i}:{S_MASK+2*i+1}]')
    A(f'''
    v_max3_f32 v{T0}, v{SX0}, v{SX0+1}, v{SX0+2}
    v_max3_f32 v{T1}, v{SX0+3}, v{SX1}, v{SX1+1}
    v_max3_f32 v{T0}, v{T0}, v{SX1+2}, v{SX1+3}
    v_max3_f32 v{T1}, v{T1}, v{SM}, v{SM+1}
    v_max_f32 v{T0}, v{T0}, v{T1}
    v_mov_b32 v{T1}, v{T0}
    v_permlane32_swap_b32 v{T0}, v{T1}
    v_max_f32 v{T0}, v{T0}, v{T1}
    v_mov_b32 v{T1}, v{T0}
    v_permlane16_swap_b32 v{T0}, v{T1}
    v_max_f32 v{T0}, v{T0}, v{T1}
    v_mul_f32 v{T0}, s{S_C}, v{T0}
    ''')
    for i in range(10): A(f'v_fma_f32 v{SX0+i}, v{SX0+i}, s{S_C}, -v{T0}')
    for i in range(10): A(f'v_exp_f32 v{SX0+i}, v{SX0+i}')
    for i in range(5): A(f'v_cvt_pk_bf16_f32 v{PB+i}, v{SX0+2*i}, v{SX0+2*i+1}')
    A(f'v_mov_b32 v{PM+1}, 0')
    for i in range(4): A(f'v_mov_b32 v{VMP+2*i}, v{VM+i}\nv_mov_b32 v{VMP+2*i+1}, 0')
    for i in range(4): A(f'v_mfma_f32_16x16x32_bf16 v[{OA+4*i}:{OA+4*i+3}], v[{VX+4*i}:{VX+4*i+3}], v[{PB}:{PB+3}], 0')
    for i in range(4): A(f'v_mfma_f32_16x16x16_bf16 v[{OA+4*i}:{OA+4*i+3}], v[{VMP+2*i}:{VMP+2*i+1}], v[{PM}:{PM+1}], v[{OA+4*i}:{OA+4*i+3}]')
    A(f'v_add_f32 v{T0}, v{SX0}, v{SX0+1}')
    for i in range(2,10): A(f'v_add_f32 v{T0}, v{T0}, v{SX0+i}')
    A(f'''
    v_mov_b32 v{T1}, v{T0}
    v_permlane32_swap_b32 v{T0}, v{T1}
    v_add_f32 v{T0}, v{T0}, v{T1}
    v_mov_b32 v{T1}, v{T0}
    v_permlane16_swap_b32 v{T0}, v{T1}
    v_add_f32 v{T0}, v{T0}, v{T1}
    v_rcp_f32 v{T0}, v{T0}
    v_add_u32 v{T1}, s{S_OEP}, v{OWA}
    ''')
    for i in range(16): A(f'v_mul_f32 v{OA+i}, v{OA+i}, v{T0}')
    for i in range(8): A(f'v_cvt_pk_bf16_f32 v{SX0+i}, v{OA+2*i}, v{OA+2*i+1}')
    A(f'ds_write_b128 v{T1}, v[{SX0}:{SX0+3}]')
    A(f'ds_write_b128 v{T1}, v[{SX0+4}:{SX0+7}] offset:1024')
    A(f's_add_u32 s{S_T}, s{S_OEP}, {L_OE}\nv_add_u32 v{T1}, s{S_T}, v{L16}')
    A.wait_ds_writes(); A('s_barrier')
    for i in range(8): A(f'ds_read_b128 v[{OF+4*i}:{OF+4*i+3}], v{T1} offset:{i*1024}')
    if flags:
        A('s_waitcnt lgkmcnt(0)')
        A(f's_lshr_b32 s{S_T}, s{S_SEG}, 2\ns_lshl_b32 s{S_T}, s{S_T}, 7\ns_add_u32 s{S_T}, s{S_T}, {F2_OFF}')
        poll(A,S_T,'ge',7)
    A(f's_lshr_b32 s{S_T+1}, s{S_B4}, 1\ns_add_u32 s{S_T+1}, s{S_T+1}, {FF_OFF}\ns_lshl_b32 s{S_T+2}, s{S_SEG}, 15')
    for i in range(7):
        if i: A(f's_add_u32 s{S_T+1}, s{S_T+1}, {4*MiB}')
        A(f'buffer_load_dwordx4 v[{CI+4*i}:{CI+4*i+3}], v{SLA}, {WSR}, s{S_T+1} offen{ldm}')
    A(f'buffer_load_dwordx2 v[{XR}:{XR+1}], v{XA}, s[{SRD_X}:{SRD_X+3}], s{S_T+2} offen')
    A(f's_lshl_b32 s{S_T}, s{S_W}, 18\ns_add_u32 s{S_T}, s{S_T}, s{S_GB}\ns_lshl_b32 s{S_T+1}, s{S_H}, 10\ns_add_u32 s{S_T}, s{S_T}, s{S_T+1}')
    def epi(c):
        acc=WA+8*(c%2); o=PK+4*(c%2)
        L=[f'v_cvt_pk_bf16_f32 v{o+i}, v{acc+2*i}, v{acc+2*i+1}' for i in range(4)]
        L+=[f'v_and_or_b32 v{o}, v{o}, -2, s{S_E}', f'v_and_or_b32 v{o+2}, v{o+2}, -2, s{S_E}',
            f'buffer_store_dwordx4 v[{o}:{o+3}], v{L16}, {WSR}, s{S_T} offen{st}', f's_add_u32 s{S_T}, s{S_T}, 32768']
        return L
    pend=[]
    for c in range(8):
        n=0
        for ks in range(4):
            for tq in range(2):
                acc=WA+8*(c%2)+4*tq; b=(c*4+ks)*4; o=OF+(tq*4+ks)*4
                cc='0' if ks==0 else f'v[{acc}:{acc+3}]'
                A(f'v_mfma_f32_16x16x32_bf16 v[{acc}:{acc+3}], v[{o}:{o+3}], a[{b}:{b+3}], {cc}')
                n+=1
                if n>=3:
                    for _ in range(2):
                        if pend: A(pend.pop(0))
        pend=epi(c)
    A(f'v_lshlrev_b32 v{RA}, 16, v{XR}\nv_and_b32 v{RA+1}, 0xffff0000, v{XR}\nv_lshlrev_b32 v{RA+2}, 16, v{XR+1}\nv_and_b32 v{RA+3}, 0xffff0000, v{XR+1}')
    for x in pend: A(x)
    for i in range(7):
        for r in range(4): A(f'v_add_f32 v{RA+r}, v{RA+r}, v{CI+4*i+r}')
    A(f's_lshl_b32 s{S_T}, s{S_H}, 15\ns_add_u32 s{S_T}, s{S_T}, s{S_GB}')
    gld=[]
    for jj in range(8):
        gld.append(f's_add_u32 s{S_T+1}, s{S_T}, {jj*4096}')
        gld.append(f'buffer_load_dwordx4 v[{GA+4*jj}:{GA+4*jj+3}], v{GAD}, {WSR}, s{S_T+1} offen sc1')
    for x in gld: A(x)
    A.label(Lg0, fence=False)
    A(f'v_mov_b32 v{T0}, 0')
    R2=CI
    for jj in range(8):
        m=GA+4*jj
        c=f'v[{RA}:{RA+3}]' if jj==0 else f'v[{R2}:{R2+3}]'
        A(f'v_mfma_f32_16x16x32_bf16 v[{R2}:{R2+3}], v[{m}:{m+3}], v[{SEL}:{SEL+3}], {c}')
        A(f'v_bitop3_b32 v{T0}, v{T0}, v{m}, s{S_E} bitop3:0xf6')
        A(f'v_bitop3_b32 v{T0}, v{T0}, v{m+2}, s{S_E} bitop3:0xf6')
    A(f'v_and_b32 v{T0}, 1, v{T0}\nv_cmp_ne_u32 vcc, 0, v{T0}')
    A.branch(f's_cbranch_vccnz {Lgr}', fence=False)
    A.label(Lgo, fence=False)
    A(f'v_cvt_pk_bf16_f32 v{XR}, v{R2}, v{R2+1}\nv_cvt_pk_bf16_f32 v{XR+1}, v{R2+2}, v{R2+3}')
    A(f'buffer_store_dwordx2 v[{XR}:{XR+1}], v{XA}, s[{SRD_O}:{SRD_O+3}], s{S_T+2} offen')
    A(f's_add_u32 s{S_IT}, s{S_IT}, 1\ns_add_u32 s{S_SEG}, s{S_SEG}, {nteams}\ns_cmp_lt_u32 s{S_SEG}, 64')
    A.branch(f's_cbranch_scc0 {Lend}')
    prefetch(A,S_SEG,ldm,flags)
    A.branch(f's_branch {Ltop}')
    A.label(Lgr)
    A.reset_queues()
    A(f's_add_u32 s{S_RETRY}, s{S_RETRY}, 1\ns_cmp_gt_u32 s{S_RETRY}, {MAXRETRY}')
    A.branch(f's_cbranch_scc1 {Lgo}', fence=False)
    A('s_sleep 1')
    A.auto=False
    for x in gld: A(x)
    A.auto=True
    A.branch(f's_branch {Lg0}')
    A.label(Lend)
    A.reset_queues()
```

```python
from asmlib import *
from layout import *
WK_LDS=65536
XF=0
ACC=128
WF=192
HF=216
TA=232
VG=240; VG2=241; L16=242; T0=244; T1=245; T2=246; T3=247; TB=248
S_W=3; S_RB=4; S_ID=5
SRD_WS=8; SRD_A=12; SRD_B=16; SRD_C=24
S_T=20; S_M0=28; S_SO=29; S_OUT=30; S_CNT=31
NB=6
def srd(A, d, lo, size):
    A(f's_mov_b32 s{d}, s{lo}\ns_and_b32 s{d+1}, s{lo+1}, 0xffff\ns_mov_b32 s{d+2}, {size}\ns_mov_b32 s{d+3}, 0x20000')

def load_xf(A, ldm=''):
    A(f's_lshl_b32 s{S_T}, s{S_RB}, 2\ns_add_u32 s{S_T}, s{S_T}, s{S_W}\ns_lshl_b32 s{S_T}, s{S_T}, 15\ns_add_u32 s{S_T}, s{S_T}, {XN_OFF}')
    for i in range(32):
        if i and i%4==0: A(f's_add_u32 s{S_T}, s{S_T}, 4096')
        A(f'buffer_load_dwordx4 v[{XF+4*i}:{XF+4*i+3}], v{L16}, s[{SRD_WS}:{SRD_WS+3}], s{S_T} offen offset:{(i%4)*1024}{ldm}')

def lane_consts(A, tid):
    A(f'''
    v_and_b32 v{T0}, 63, v{tid}
    v_lshlrev_b32 v{L16}, 4, v{T0}
    s_lshl_b32 s{S_M0}, s{S_W}, 10
    ''')

def tr_addr_256(A, perm):
    A(f'''
    v_lshrrev_b32 v{T0}, 4, v{L16}       ; lane
    v_bfe_u32 v{T1}, v{T0}, 2, 2         ; r
    v_lshrrev_b32 v{T2}, 4, v{T0}        ; g
    v_lshl_add_u32 v{T3}, v{T2}, {2 if perm else 3}, v{T1}
    v_lshlrev_b32 v{T3}, 8, v{T3}
    v_and_b32 v{T0}, 3, v{T0}
    v_lshl_add_u32 v{T3}, v{T0}, 3, v{T3}
    v_and_b32 v{T2}, 1, v{T2}
    v_lshl_add_u32 v{T1}, v{T2}, 2, v{T1}
    v_lshl_add_u32 v{TA}, v{T1}, 5, v{T3}
    ''')
    for p in range(1,8): A(f'v_xor_b32 v{TA+p}, {p*32}, v{TA}')

def dma_off_256(A, dst, pitch_log2, perm):
    A(f'''
    v_lshrrev_b32 v{T0}, 8, v{L16}       ; l>>4
    v_bfe_u32 v{T1}, v{L16}, 4, 4        ; lo
    {"s_and_b32 s%d, s%d, 1"%(S_T,S_W) if perm else "s_lshr_b32 s%d, s%d, 1"%(S_T,S_W)}
    s_lshl_b32 s{S_T}, s{S_T}, 2
    v_or_b32 v{T2}, s{S_T}, v{T0}
    v_lshlrev_b32 v{T2}, 1, v{T2}
    v_xor_b32 v{T1}, v{T1}, v{T2}
    v_lshlrev_b32 v{T1}, 4, v{T1}
    s_lshl_b32 s{S_T}, s{S_W}, 2
    v_add_u32 v{T0}, s{S_T}, v{T0}
    v_lshl_add_u32 v{dst}, v{T0}, {pitch_log2}, v{T1}
    ''')

class Pipe:
    def __init__(self, A): self.A=A
    def run(self, stages, pre=3):
        A=self.A; n=len(stages)
        for i in range(min(pre,n)): stages[i][0](i%4, ('st',i))
        for i in range(n):
            A.wait_vm_tag(('st',i))
            A('s_waitcnt lgkmcnt(0)')
            A('s_barrier')
            if i+pre<n: stages[i+pre][0]((i+pre)%4, ('st',i+pre))
            stages[i][1](i%4)

def mm_stage(A, slot, items):
    def rd(n):
        ar,off,_=items[n]; b=WF+4*(n%NB)
        A(f'ds_read_b64_tr_b16 v[{b}:{b+1}], v{ar} offset:{slot*16384+off[0]}')
        A(f'ds_read_b64_tr_b16 v[{b+2}:{b+3}], v{ar} offset:{slot*16384+off[1]}')
    D=4
    for n in range(min(D,len(items))): rd(n)
    for n,(ar,off,ms) in enumerate(items):
        b=WF+4*(n%NB); W=f'v[{b}:{b+3}]'
        A(ms[0].format(W=W))
        if n+D<len(items): rd(n+D)
        A(ms[1].format(W=W))

def prime(A, nst, first):
    A.reset_queues()
    for i in range(nst):
        for _ in range(4): A.vq.append((set(),('st',first+i)))

def run_stages(A, n, dma, comp, pre=3):
    for i in range(n):
        A.wait_vm_tag(('st',i))
        A('s_waitcnt lgkmcnt(0)')
        A('s_barrier')
        dma(i+pre, (i+pre)%4, ('st',i+pre))
        comp(i, i%4)

def qkv_task(A, stm=''):
    WSR=f's[{SRD_WS}:{SRD_WS+3}]'
    tr_addr_256(A, False)
    dma_off_256(A, VG, 13, False)
    A(f's_lshl_b32 s{S_T}, s{S_ID}, 8\nv_add_u32 v{VG}, s{S_T}, v{VG}')
    A(f's_load_dwordx2 s[32:33], s[0:1], {KA_WV}\ns_load_dwordx2 s[34:35], s[0:1], {KA_WK}\ns_load_dwordx2 s[36:37], s[0:1], {KA_WQ}\ns_waitcnt lgkmcnt(0)')
    srd(A, SRD_A, 32, 4*MiB); srd(A, SRD_B, 34, 4*MiB)
    A(f's_lshl_b32 s{S_OUT}, s{S_RB}, 2\ns_add_u32 s{S_OUT}, s{S_OUT}, s{S_W}\ns_lshl_b32 s{S_OUT}, s{S_OUT}, 5\ns_add_u32 s{S_OUT}, s{S_OUT}, s{S_ID}\ns_lshl_b32 s{S_OUT}, s{S_OUT}, 13')
    A(f's_add_u32 s{S_OUT}, s{S_OUT}, {VX_OFF}')
    def dma(i, slot, tag):
        sr = SRD_A if i<8 else SRD_B
        sidx=i%8
        for j in range(4):
            A(f's_add_u32 m0, s{S_M0}, {slot*16384+j*4096}')
            A(f's_mov_b32 s{S_SO}, {(64*sidx+16*j)*8192}')
            A(f'buffer_load_dwordx4 v{VG}, s[{sr}:{sr+3}], s{S_SO} offen lds', tag=tag)
    def mkcomp(isv):
        def comp(sidx, slot):
            items=[]
            for kk in range(2):
                ks=2*sidx+kk
                for p in range(8):
                    ms=[]
                    for tt in range(2):
                        acc=ACC+(p*2+tt)*4; x=XF+(tt*16+ks)*4
                        c='0' if ks==0 else f'v[{acc}:{acc+3}]'
                        if isv: ms.append(f'v_mfma_f32_16x16x32_bf16 v[{acc}:{acc+3}], v[{x}:{x+3}], {{W}}, {c}')
                        else: ms.append(f'v_mfma_f32_16x16x32_bf16 v[{acc}:{acc+3}], {{W}}, v[{x}:{x+3}], {c}')
                    items.append((TA+p,(kk*8192,kk*8192+1024),ms))
            mm_stage(A,slot,items)
            if sidx==7:
                A(f's_add_u32 s{S_T+1}, s{S_OUT}, 4096')
                for fr in range(8):
                    if isv: srcs=[ACC+(fr*2+0)*4, ACC+(fr*2+1)*4]
                    else:
                        ksq=fr//2; tt=fr%2; srcs=[ACC+((2*ksq)*2+tt)*4, ACC+((2*ksq+1)*2+tt)*4]
                    o=HF+4*(fr%4)
                    for q_,sr in enumerate(srcs):
                        A(f'v_cvt_pk_bf16_f32 v{o+2*q_}, v{sr}, v{sr+1}')
                        A(f'v_cvt_pk_bf16_f32 v{o+2*q_+1}, v{sr+2}, v{sr+3}')
                    A(f'buffer_store_dwordx4 v[{o}:{o+3}], v{L16}, {WSR}, s{S_OUT if fr<4 else S_T+1} offen offset:{(fr%4)*1024}{stm}')
                A(f's_sub_u32 s{S_OUT}, s{S_OUT}, {16*MiB}')
        return comp
    assert VX_OFF-KX_OFF==16*MiB and KX_OFF-QX_OFF==16*MiB
    for i in range(3): dma(i,i,('st',i))
    run_stages(A,8,dma,mkcomp(True))
    A(f's_mov_b32 s{S_CNT}, 0')
    L=A.newlabel('Lkq')
    A.label(L)
    prime(A,3,0)
    A(f's_mov_b32 s{SRD_A}, s{SRD_B}\ns_mov_b32 s{SRD_A+1}, s{SRD_B+1}\ns_mov_b32 s{SRD_B}, s36\ns_and_b32 s{SRD_B+1}, s37, 0xffff')
    run_stages(A,8,dma,mkcomp(False))
    A(f's_add_u32 s{S_CNT}, s{S_CNT}, 1\ns_cmp_lt_u32 s{S_CNT}, 2')
    A.branch(f's_cbranch_scc1 {L}')
    A('s_waitcnt vmcnt(0)')
    A.reset_queues()

def ffn_task(A, stm=''):
    WSR=f's[{SRD_WS}:{SRD_WS+3}]'
    tr_addr_256(A, True)
    dma_off_256(A, VG2, 10, True)
    A(f'''
    v_lshrrev_b32 v{T0}, 7, v{L16}
    v_bfe_u32 v{T1}, v{L16}, 4, 3
    v_bfe_u32 v{T2}, v{T0}, 1, 1
    s_and_b32 s{S_T}, s{S_W}, 1
    s_lshl_b32 s{S_T}, s{S_T}, 1
    v_or_b32 v{T2}, s{S_T}, v{T2}
    v_lshlrev_b32 v{T2}, 1, v{T2}
    v_xor_b32 v{T1}, v{T1}, v{T2}
    v_lshlrev_b32 v{T1}, 4, v{T1}
    s_lshl_b32 s{S_T}, s{S_W}, 3
    v_add_u32 v{T0}, s{S_T}, v{T0}
    s_movk_i32 s{S_T}, 3584
    v_mul_lo_u32 v{T0}, v{T0}, s{S_T}
    v_add_u32 v{VG}, v{T0}, v{T1}
    s_lshl_b32 s{S_T}, s{S_ID}, 9
    v_add_u32 v{VG}, s{S_T}, v{VG}
    v_lshrrev_b32 v{T0}, 4, v{L16}
    v_bfe_u32 v{T1}, v{T0}, 2, 2
    v_lshrrev_b32 v{T2}, 4, v{T0}
    v_lshl_add_u32 v{T3}, v{T2}, 3, v{T1}
    v_lshlrev_b32 v{T3}, 7, v{T3}
    v_and_b32 v{T0}, 3, v{T0}
    v_lshl_add_u32 v{T3}, v{T0}, 3, v{T3}
    v_lshrrev_b32 v{T1}, 1, v{T1}
    v_and_b32 v{T2}, 1, v{T2}
    v_lshl_add_u32 v{T1}, v{T2}, 1, v{T1}
    v_lshl_add_u32 v{TB}, v{T1}, 5, v{T3}
    v_xor_b32 v{TB+1}, 32, v{TB}
    v_xor_b32 v{TB+2}, 64, v{TB}
    v_xor_b32 v{TB+3}, 96, v{TB}
    s_lshl_b32 s{S_T}, s{S_ID}, 18
    v_add_u32 v{VG2}, s{S_T}, v{VG2}
    ''')
    A(f's_load_dwordx2 s[32:33], s[0:1], {KA_WG}\ns_load_dwordx2 s[34:35], s[0:1], {KA_WU}\ns_load_dwordx2 s[36:37], s[0:1], {KA_WD}\ns_waitcnt lgkmcnt(0)')
    srd(A,SRD_A,32,512*3584); srd(A,SRD_B,34,512*3584); srd(A,SRD_C,36,1792*1024)
    A('s_mov_b32 s38, 0xc0135761\ns_mov_b32 s39, 0xbdd2d3e8')
    A('s_mov_b32 s40, 0\ns_mov_b32 s41, 0')
    def dma(i, slot, tag):
        nxt = i>=12
        ii=i%12
        if ii<8:
            for mi,sr in enumerate((SRD_A,SRD_B)):
                for j in range(2):
                    A(f's_add_u32 m0, s{S_M0}, {slot*16384+mi*8192+j*4096}')
                    A(f's_add_u32 s{S_SO}, s40, {(64*ii+32*j)*3584+(128 if nxt else 0)}')
                    A(f'buffer_load_dwordx4 v{VG}, s[{sr}:{sr+3}], s{S_SO} offen lds', tag=tag)
        else:
            cq=ii-8
            for j in range(4):
                A(f's_add_u32 m0, s{S_M0}, {slot*16384+j*4096}')
                A(f's_add_u32 s{S_SO}, s41, {16*j*1024+cq*256}')
                A(f'buffer_load_dwordx4 v{VG2}, s[{SRD_C}:{SRD_C+3}], s{S_SO} offen lds', tag=tag)
    def comp(i, slot):
        items=[]
        if i<8:
            sidx=i
            for kk in range(2):
                ks=2*sidx+kk
                for p in range(8):
                    ms=[]
                    for tt in range(2):
                        acc=ACC+(p*2+tt)*4; x=XF+(tt*16+ks)*4
                        c='0' if ks==0 else f'v[{acc}:{acc+3}]'
                        ms.append(f'v_mfma_f32_16x16x32_bf16 v[{acc}:{acc+3}], {{W}}, v[{x}:{x+3}], {c}')
                    o=(p//4)*8192+kk*4096
                    items.append((TB+(p%4),(o,o+512),ms))
            mm_stage(A,slot,items)
            if sidx==7:
                for ft in range(4):
                    for tt in range(2):
                        g_=ACC+(ft*2+tt)*4; u_=ACC+((4+ft)*2+tt)*4
                        for r in range(4): A(f'v_mul_f32 v{T0+r}, v{g_+r}, v{g_+r}')
                        for r in range(4):
                            A(f'v_mov_b32 v{WF+r}, s38')
                            A(f'v_fmac_f32 v{WF+r}, s39, v{T0+r}')
                        for r in range(4): A(f'v_mul_f32 v{T0+r}, v{WF+r}, v{g_+r}')
                        for r in range(4): A(f'v_exp_f32 v{T0+r}, v{T0+r}')
                        for r in range(4): A(f'v_mul_f32 v{u_+r}, v{u_+r}, v{g_+r}')
                        for r in range(4): A(f'v_add_f32 v{T0+r}, 1.0, v{T0+r}')
                        for r in range(4): A(f'v_rcp_f32 v{T0+r}, v{T0+r}')
                        for r in range(4): A(f'v_mul_f32 v{u_+r}, v{u_+r}, v{T0+r}')
                        o=HF+((ft//2)*2+tt)*4+(ft%2)*2
                        A(f'v_cvt_pk_bf16_f32 v{o}, v{u_}, v{u_+1}')
                        A(f'v_cvt_pk_bf16_f32 v{o+1}, v{u_+2}, v{u_+3}')
        else:
            cq=i-8
            for k2 in range(2):
                for p in range(8):
                    ms=[]
                    for tt in range(2):
                        acc=((cq*8+p)*2+tt)*4; h=HF+(k2*2+tt)*4
                        ms.append(f'v_mfma_f32_16x16x32_bf16 a[{acc}:{acc+3}], {{W}}, v[{h}:{h+3}], a[{acc}:{acc+3}]')
                    items.append((TA+p,(k2*8192,k2*8192+4096),ms))
            mm_stage(A,slot,items)
    for i in range(3): dma(i,i,('st',i))
    for r in range(256): A(f'v_accvgpr_write_b32 a{r}, 0')
    A('s_waitcnt vmcnt(12)')
    L=A.newlabel('Lffg')
    A.label(L)
    prime(A,3,0)
    run_stages(A,12,dma,comp)
    A('s_add_u32 s40, s40, 128\ns_add_u32 s41, s41, 65536\ns_cmp_lt_u32 s40, 512')
    A.branch(f's_cbranch_scc1 {L}')
    A(f's_lshl_b32 s{S_OUT}, s{S_RB}, 2\ns_add_u32 s{S_OUT}, s{S_OUT}, s{S_W}\ns_lshl_b32 s{S_OUT}, s{S_OUT}, 16\ns_lshl_b32 s{S_T}, s{S_ID}, 22\ns_add_u32 s{S_OUT}, s{S_OUT}, s{S_T}\ns_add_u32 s{S_OUT}, s{S_OUT}, {FF_OFF}')
    for i in range(64):
        if i and i%4==0: A(f's_add_u32 s{S_OUT}, s{S_OUT}, 4096')
        A(f'buffer_store_dwordx4 a[{4*i}:{4*i+3}], v{L16}, {WSR}, s{S_OUT} offen offset:{(i%4)*1024}{stm}')
    A('s_waitcnt vmcnt(0)')
    A.reset_queues()
```

```python
import sys; sys.path.insert(0,'gen')
from asmlib import *
from layout import *
from common import *
import ln, worker as W, chain5 as C, stage2 as S2
NT=2
LDS=C.CHAIN_LDS
LM=C.L_MISC
NTASK=16*39
def rc(i): return RC_OFF+128*i
def ln_kernel(A):
    kstart(A,'ln_kernel')
    A(f'''
    s_cmp_ge_u32 s2, 256
    s_cbranch_scc1 Lln_exit
    s_load_dwordx2 s[4:5], s[0:1], {KA_X}
    s_load_dwordx2 s[6:7], s[0:1], {KA_WS}
    s_waitcnt lgkmcnt(0)
    ''')
    ln.srd(A,8,4,2*MiB); ln.srd(A,12,6,WS_SIZE)
    A(f'''
    s_lshl_b32 s20, s2, 8
    s_add_u32 s20, s20, {FL_OFF}
    v_and_b32 v1, 63, v0
    v_lshlrev_b32 v1, 2, v1
    v_mov_b32 v2, 0
    buffer_store_dword v2, v1, s[12:15], s20 offen
    ''')
    ln.ln_rows(A,2,8,12)
    A.label('Lln_exit')
    A('s_endpgm')
SWS=8
def bcast_atomic(A, op, val, saddr, dst):
    lab=A.newlabel('Lba')
    A(f'''
    s_waitcnt lgkmcnt(0)
    s_barrier
    v_mov_b32 v250, {val}
    v_mov_b32 v251, {LM}
    v_cmp_eq_u32 vcc, 0, v253
    s_and_saveexec_b64 s[98:99], vcc
    s_cbranch_execz {lab}
    buffer_atomic_{op} v250, off, s[{SWS}:{SWS+3}], s{saddr} sc0
    s_waitcnt vmcnt(0)
    ds_write_b32 v251, v250
    s_waitcnt lgkmcnt(0)
    ''')
    A.label(lab)
    A.reset_queues()
    A(f'''
    s_mov_b64 exec, s[98:99]
    s_barrier
    ds_read_b32 v250, v251
    s_waitcnt lgkmcnt(0)
    v_readfirstlane_b32 s{dst}, v250
    s_nop 3
    ''')
def team_sync(A, srole, sxcc, dstmask, v=(1,2)):
    p=A.newlabel('Lts')
    A(f'''
    s_waitcnt vmcnt(0) lgkmcnt(0)
    s_barrier
    s_mul_i32 s96, s{srole}, 384
    s_add_u32 s96, s96, {rc(1)}
    s_add_u32 s97, s96, 128
    v_mov_b32 v3, {LM}
    s_cmp_lg_u32 s3, 0
    s_cbranch_scc1 {p}_2
    s_lshl_b32 s95, 1, s{sxcc}
    v_mov_b32 v1, s95
    s_mov_b64 exec, 1
    buffer_atomic_or v1, off, s[{SWS}:{SWS+3}], s97 sc0
    s_waitcnt vmcnt(0)
    v_mov_b32 v1, 1
    buffer_atomic_add v1, off, s[{SWS}:{SWS+3}], s96
    s_mov_b32 s94, 0
    ''')
    A.label(p+'_1')
    A(f'''
    buffer_load_dword v1, off, s[{SWS}:{SWS+3}], s96 sc1
    s_waitcnt vmcnt(0)
    v_readfirstlane_b32 s95, v1
    s_add_u32 s94, s94, 1
    s_cmp_gt_u32 s94, 30000000
    s_cbranch_scc1 {p}_3
    s_cmp_lt_u32 s95, 32
    s_cbranch_scc1 {p}_1
    ''')
    A.label(p+'_3')
    A(f'''
    buffer_load_dword v1, off, s[{SWS}:{SWS+3}], s97 sc1
    s_waitcnt vmcnt(0)
    ds_write_b32 v3, v1
    s_waitcnt lgkmcnt(0)
    s_mov_b64 exec, -1
    ''')
    A.label(p+'_2')
    A.reset_queues()
    A(f'''
    s_barrier
    ds_read_b32 v1, v3
    s_waitcnt lgkmcnt(0)
    v_readfirstlane_b32 s{dstmask}, v1
    s_nop 3
    ''')
def tstamp(A, idx, extra=None):
    A(f'''
    s_memrealtime s[94:95]
    s_lshl_b32 s96, s2, 6
    s_add_u32 s96, s96, {TS_OFF+idx*8}
    s_waitcnt lgkmcnt(0)
    v_mov_b32 v0, s94
    v_mov_b32 v1, {('s%d'%extra) if extra is not None else 0}
    buffer_store_dwordx2 v[0:1], off, s[{SWS}:{SWS+3}], s96
    ''')
def mega_kernel(A, force_slow=False, quota=32, dA=48, dB=48, ts=False, maxx=8):
    kstart(A,'mega_kernel')
    A(f'''
    s_cmp_ge_u32 s2, 256
    s_cbranch_scc1 Lm_exit
    s_getreg_b32 s101, hwreg(HW_REG_XCC_ID)
    s_and_b32 s101, s101, 15
    s_load_dwordx2 s[6:7], s[0:1], {KA_WS}
    s_memrealtime s[92:93]
    v_lshrrev_b32 v1, 6, v0
    v_mov_b32 v253, v0
    v_readfirstlane_b32 s3, v1
    s_waitcnt lgkmcnt(0)
    s_mov_b32 s100, s92
    ''')
    W.srd(A,SWS,6,WS_SIZE)
    A(f's_mov_b32 s93, s101\ns_cmp_gt_u32 s101, {NT}')
    A.branch('s_cbranch_scc1 Lm_worker')
    if quota<32:
        A(f's_cmp_ge_u32 s2, {quota*8}')
        A.branch('s_cbranch_scc1 Lm_worker')
    A.label('Lm_try')
    A.reset_queues()
    A(f's_mul_i32 s96, s93, 384\ns_add_u32 s96, s96, {rc(0)}')
    bcast_atomic(A,'add',1,96,4)
    A('s_cmp_ge_u32 s4, 32')
    A.branch('s_cbranch_scc1 Lm_worker')
    A('v_mov_b32 v0, v253\ns_cmp_lg_u32 s93, 0')
    A.branch('s_cbranch_scc1 Lm_s2')
    C.chain_setup(A)
    C.chain_init_rings(A,' sc1')
    C.chain_load_weights(A)
    A('s_mov_b32 s93, 0')
    team_sync(A,93,101,93)
    A('s_bcnt1_i32_b32 s93, s93\ns_cmp_lg_u32 s93, 1')
    A.branch('s_branch Lm_chs' if force_slow else 's_cbranch_scc1 Lm_chs')
    if ts:
        tstamp(A,1,100); A('s_memtime s[98:99]\ns_waitcnt lgkmcnt(0)')
    C.chain_loop(A,'',' sc1',dbg=False,delayA=dA,delayB=dB,flags=True)
    if ts:
        A('s_memtime s[96:97]\ns_waitcnt lgkmcnt(0)\ns_sub_u32 s98, s96, s98')
        tstamp(A,3,98)
        A('s_mov_b32 s97, 100'); tstamp(A,2,C.S_RETRY); tstamp(A,0,97)
    A.branch('s_branch Lm_exit')
    A.label('Lm_chs')
    A.reset_queues()
    C.chain_loop(A,' sc1',' sc1',dbg=False,delayA=dA,delayB=dB,flags=True)
    A.branch('s_branch Lm_exit')
    A.label('Lm_s2')
    A.reset_queues()
    A(f's_sub_u32 s{S2.S_TEAM}, s93, 1')
    S2.s2_setup(A,' sc1')
    team_sync(A,93,101,93)
    A('s_bcnt1_i32_b32 s93, s93\ns_cmp_lg_u32 s93, 1')
    A.branch('s_branch Lm_s2s' if force_slow else 's_cbranch_scc1 Lm_s2s')
    if ts: tstamp(A,1,100)
    S2.s2_loop(A,'',' sc1',NT,flags=True)
    if ts: A('s_mov_b32 s97, 200'); tstamp(A,2,S2.S_RETRY); tstamp(A,0,97)
    A.branch('s_branch Lm_exit')
    A.label('Lm_s2s')
    A.reset_queues()
    S2.s2_loop(A,' sc1',' sc1',NT,flags=True)
    A.branch('s_branch Lm_exit')
    A.label('Lm_worker')
    A.reset_queues()
    if maxx<8:
        A(f's_cmp_ge_u32 s101, {maxx}')
        A.branch('s_cbranch_scc1 Lm_exit')
    W.lane_consts(A,253)
    A('s_mov_b32 s91, 0\ns_mov_b32 s84, 0')
    A.label('Lm_wloop')
    A.reset_queues()
    A(f'''
    s_waitcnt lgkmcnt(0)
    s_barrier
    v_mov_b32 v251, {LM}
    s_cmp_lg_u32 s3, 0
    s_cbranch_scc1 Lm_w2
    s_mov_b32 s95, {rc(0)}
    s_mov_b32 s96, {rc(3)}
    s_mov_b32 s97, {rc(6)}
    s_mov_b32 s90, 0
    ''')
    A.label('Lm_w0')
    A(f'''
    s_memrealtime s[92:93]
    s_waitcnt lgkmcnt(0)
    s_sub_u32 s92, s92, s100
    s_mov_b32 s94, 255
    s_cmp_lt_u32 s92, 3000
    s_cselect_b32 s89, 1, 0              ; early
    s_cmp_eq_u32 s89, 1
    s_cselect_b32 s88, s91, 1
    s_andn2_b32 s88, s88, s84
    s_cmp_eq_u32 s88, 0
    s_cbranch_scc1 Lm_w1
    buffer_load_dword v244, off, s[{SWS}:{SWS+3}], s95 sc1
    buffer_load_dword v245, off, s[{SWS}:{SWS+3}], s96 sc1
    buffer_load_dword v246, off, s[{SWS}:{SWS+3}], s97 sc1
    s_waitcnt vmcnt(0)
    v_readfirstlane_b32 s85, v244
    v_readfirstlane_b32 s86, v245
    v_readfirstlane_b32 s87, v246
    s_nop 3
    s_cmp_lt_u32 s87, 32
    s_cselect_b32 s94, 2, s94
    s_cmp_lt_u32 s86, 32
    s_cselect_b32 s94, 1, s94
    s_cmp_lt_u32 s85, 32
    s_cselect_b32 s94, 0, s94
    s_cmp_eq_u32 s94, 255
    s_cselect_b32 s84, 1, 0
    s_cbranch_scc1 Lm_w1
    s_cmp_eq_u32 s89, 0
    s_cbranch_scc1 Lm_w1
    s_sleep 16
    s_branch Lm_w0
    ''')
    A.label('Lm_w1')
    A(f'''
    v_mov_b32 v250, s94
    ds_write_b32 v251, v250
    s_waitcnt lgkmcnt(0)
    ''')
    A.label('Lm_w2')
    A.reset_queues()
    A(f'''
    s_barrier
    ds_read_b32 v250, v251
    s_waitcnt lgkmcnt(0)
    v_readfirstlane_b32 s93, v250
    s_nop 3
    s_cmp_lg_u32 s93, 255
    s_cbranch_scc1 Lm_try
    s_cmp_eq_u32 s91, 1
    s_cbranch_scc1 Lm_wexit
    s_mov_b32 s96, {rc(12)}
    ''')
    bcast_atomic(A,'add',1,96,92)
    A(f'''
    s_cmp_ge_u32 s92, {NTASK}
    s_cselect_b32 s91, 1, 0
    s_cbranch_scc1 Lm_wloop
    s_mul_hi_u32 s{W.S_RB}, s92, {(1<<32)//39+1}
    s_mul_i32 s93, s{W.S_RB}, 39
    s_sub_u32 s{W.S_ID}, s92, s93
    ''')
    W.load_xf(A)
    A(f's_cmp_ge_u32 s{W.S_ID}, 32')
    A.branch('s_cbranch_scc1 Lm_ffn')
    sv=list(A.vq)
    W.qkv_task(A,' sc1')
    A(f'''
    s_barrier
    s_lshl_b32 s92, s{W.S_RB}, 5
    s_add_u32 s92, s92, s{W.S_ID}
    s_lshl_b32 s92, s92, 2
    s_add_u32 s92, s92, {F1_OFF}
    v_mov_b32 v250, 1
    s_cmp_lg_u32 s3, 0
    s_cbranch_scc1 Lm_wloop
    s_mov_b64 exec, 1
    buffer_store_dword v250, off, s[{SWS}:{SWS+3}], s92 sc1
    s_mov_b64 exec, -1
    s_branch Lm_wloop
    ''')
    A.label('Lm_ffn')
    A.reset_queues(); A.vq=sv
    A(f's_sub_u32 s{W.S_ID}, s{W.S_ID}, 32')
    W.ffn_task(A,' sc1')
    A(f'''
    s_barrier
    s_lshl_b32 s92, s{W.S_RB}, 7
    s_add_u32 s92, s92, {F2_OFF}
    v_mov_b32 v250, 1
    s_cmp_lg_u32 s3, 0
    s_cbranch_scc1 Lm_wloop
    s_mov_b64 exec, 1
    buffer_atomic_add v250, off, s[{SWS}:{SWS+3}], s92
    s_mov_b64 exec, -1
    s_branch Lm_wloop
    ''')
    A.label('Lm_wexit')
    if ts: A('s_mov_b32 s97, 300'); tstamp(A,1,100); tstamp(A,2,100); tstamp(A,0,97)
    A.label('Lm_exit')
    A('s_endpgm')
def gen(path, **kw):
    A=Asm()
    header(A,['; @launch kernel=ln_kernel grid=(256,1,1) block=(256,1,1) lds=0',
              f'; @launch kernel=mega_kernel grid=(256,1,1) block=(256,1,1) lds={LDS}'])
    ln_kernel(A); mega_kernel(A,**kw)
    A.raw('.section .rodata,"a"')
    for k in (kdesc('ln_kernel',64,64),kdesc('mega_kernel')): A.raw(k)
    open(path,'w').write(A.text()); print(A.ninst)
if __name__=='__main__':
    gen('mega.s')
    n=1
    for dA,dB in ((48,48),(32,32),(16,16),(32,48),(48,32),(24,40),(0,0),(16,32)):
        gen(f'mega_t{n}.s', ts=True, dA=dA, dB=dB); n+=1
```

```python
import re

TRANS = ('v_exp_f32','v_log_f32','v_rcp_f32','v_rsq_f32','v_sqrt_f32','v_sin_f32','v_cos_f32','v_rcp_iflag_f32')
NO_DST_S = ('s_cmp','s_waitcnt','s_barrier','s_nop','s_branch','s_cbranch','s_endpgm','s_sleep','s_setprio','s_bitcmp','s_setreg')

def mfma_passes(m):
    if m.startswith('v_smfmac_f32_16x16x64'): return 4
    if m.startswith('v_smfmac_f32_32x32x32'): return 8
    if '16x16x4_f32' in m: return 8
    if '16x16x32' in m or '16x16x16' in m: return 4
    if '32x32x16' in m or '32x32x8' in m: return 8
    raise ValueError(m)

_reg_re = re.compile(r'^(-?|abs\()?([vas])(\d+|\[(\d+):(\d+)\])\)?$')
def parse_reg(op):
    op = op.strip()
    if op in ('vcc',): return [('s',106),('s',107)]
    if op == 'vcc_lo': return [('s',106)]
    if op == 'vcc_hi': return [('s',107)]
    if op == 'exec': return [('s',126),('s',127)]
    if op == 'exec_lo': return [('s',126)]
    if op == 'exec_hi': return [('s',127)]
    if op == 'm0': return [('s',124)]
    op2 = op
    if op2.startswith('-'): op2 = op2[1:]
    if op2.startswith('|') and op2.endswith('|'): op2 = op2[1:-1]
    if op2.startswith('abs(') and op2.endswith(')'): op2 = op2[4:-1]
    m = re.match(r'^([vas])(\d+)$', op2)
    if m: return [(m.group(1), int(m.group(2)))]
    m = re.match(r'^([vas])\[(\d+):(\d+)\]$', op2)
    if m: return [(m.group(1), i) for i in range(int(m.group(2)), int(m.group(3))+1)]
    return []

class Ins:
    __slots__=('text','mn','ops','kind','wr','rd','srcc','srcab','passes','dpp','lds_dma','wide_store','sdata','states')
    def __init__(self, text):
        self.text = text
        t = text.split(';')[0].strip()
        parts = t.split(None,1)
        mn = parts[0]; self.mn = mn
        rest = parts[1] if len(parts)>1 else ''
        raw = [o.strip() for o in rest.split(',')] if rest else []
        ops=[]; mods=[]
        for i,o in enumerate(raw):
            toks=o.split()
            if not toks: continue
            ops.append(toks[0]); mods+=toks[1:]
        self.ops=ops
        for m_ in mods:
            if m_.startswith('offset:'):
                o_=int(m_[7:],0)
                if mn.startswith('buffer_'): assert 0<=o_<=4095, text
                elif mn.startswith('ds_'): assert 0<=o_<=65535, text
                elif mn.startswith('global_'): assert -4096<=o_<=4095, text
        self.wr=[]; self.rd=[]; self.srcc=[]; self.srcab=[]; self.passes=0
        self.dpp = mn.endswith('_dpp') or any(m.startswith(('row_','quad_perm','wave_')) for m in mods)
        self.lds_dma=False; self.wide_store=False; self.sdata=[]
        self.states=1
        R=[parse_reg(o) for o in ops]
        def allr(lst):
            out=[]
            for x in lst: out+=x
            return out
        if mn.startswith('v_mfma') or mn.startswith('v_smfmac'):
            self.kind='mfma'; self.passes=mfma_passes(mn)
            self.wr=R[0]
            if mn.startswith('v_smfmac'):
                self.srcc=R[0]; self.srcab=R[1]+R[2]+R[3]
            else:
                self.srcc=R[3]; self.srcab=R[1]+R[2]
            self.rd=self.srcc+self.srcab
        elif mn.startswith('v_'):
            self.kind='valu'
            base=mn.replace('_e32','').replace('_e64','').replace('_dpp','').replace('_sdwa','')
            if base.startswith('v_permlane') and 'swap' in base:
                self.wr=R[0]+R[1]; self.rd=R[0]+R[1]
            elif base in ('v_add_co_u32','v_sub_co_u32','v_subrev_co_u32','v_addc_co_u32','v_subb_co_u32','v_mad_u64_u32','v_div_scale_f32'):
                self.wr=R[0]+R[1]; self.rd=allr(R[2:])
            elif base in ('v_fmac_f32','v_pk_fmac_f16','v_dot2c_f32_bf16','v_writelane_b32'):
                self.wr=R[0]; self.rd=allr(R)
            elif base=='v_nop':
                pass
            else:
                self.wr=R[0]; self.rd=allr(R[1:])
                if self.dpp: self.rd=self.rd+R[0]
            if base=='v_cndmask_b32' and len(ops)==3: self.rd+=parse_reg('vcc')
        elif mn.startswith('s_'):
            self.kind='salu'
            if mn.startswith('s_load') or mn.startswith('s_buffer_load') or mn in('s_memtime','s_memrealtime'):
                self.kind='smem'; self.wr=R[0]; self.rd=allr(R[1:])
            elif mn.startswith(NO_DST_S):
                self.rd=allr(R)
                if mn=='s_nop': self.states=int(ops[0],0)+1
            elif 'saveexec' in mn:
                self.wr=R[0]+parse_reg('exec'); self.rd=allr(R[1:])+parse_reg('exec')
            else:
                self.wr=R[0]; self.rd=allr(R[1:])
        elif mn.startswith('ds_'):
            self.kind='ds'
            if mn.startswith(('ds_read','ds_bpermute','ds_permute','ds_swizzle')) or '_rtn' in mn:
                self.wr=R[0]; self.rd=allr(R[1:])
            else:
                self.rd=allr(R)
        elif mn.startswith(('buffer_','global_')):
            self.kind='vmem'
            if 'lds' in mods or '_lds_' in mn:
                self.lds_dma=True; self.rd=allr(R)+parse_reg('m0')
            elif '_load_' in mn:
                self.wr=R[0]; self.rd=allr(R[1:])
            elif '_store_' in mn:
                self.rd=allr(R)
                if mn.endswith(('x3','x4')):
                    self.wide_store=True
                    self.sdata = R[0] if mn.startswith('buffer_') else R[1]
            elif '_atomic_' in mn:
                if 'sc0' in mods:
                    if mn.startswith('buffer_'): self.wr=R[0]; self.rd=allr(R)
                    else: self.wr=R[0]; self.rd=allr(R[1:])
                else: self.rd=allr(R)
            else:
                self.rd=allr(R)
        else:
            raise ValueError('unknown instruction: '+text)

def need(prod, cons):
    n=0
    pw=set(prod.wr)
    if prod.kind=='valu':
        vw={r for r in pw if r[0] in 'va'}
        sw={r for r in pw if r[0]=='s'}
        if vw:
            if cons.kind=='mfma' and vw & set(cons.rd): n=max(n,2)
            if cons.kind=='valu':
                cr=set(cons.rd)
                if cons.mn.startswith(('v_readfirstlane','v_readlane')) and vw & cr: n=max(n,1)
                if cons.mn.startswith('v_permlane') and vw & cr: n=max(n,2)
                if cons.dpp and vw & cr: n=max(n,2)
                if prod.mn.replace('_e32','').replace('_e64','') in TRANS and vw & cr: n=max(n,1)
        if sw:
            cr=set(cons.rd)
            if cons.kind=='vmem' and sw & cr: n=max(n,5)
            if cons.kind=='valu' and sw & cr:
                n=max(n,4 if cons.mn.startswith(('v_readlane','v_writelane')) else 2)
            if cons.kind=='mfma' and (('s',126) in sw): n=max(n,4)
            if cons.kind in('salu','smem') and sw & cr: n=max(n,1)
    elif prod.kind=='mfma':
        p=prod.passes
        if cons.kind=='mfma':
            if pw & set(cons.srcab): n=max(n,p+4)
            if pw & set(cons.srcc):
                if list(prod.wr)==list(cons.srcc) and prod.mn==cons.mn: n=max(n,0 if p>=4 else 2)
                else: n=max(n,p+2)
            elif pw & set(cons.wr): n=max(n,p+2)
        else:
            if pw & (set(cons.rd)|set(cons.wr)): n=max(n,p+4)
            if cons.kind=='valu' and set(prod.srcc) & set(cons.wr): n=max(n,p-1)
            if cons.kind in('ds','vmem') and set(prod.srcc) & set(cons.wr): n=max(n,p-1)
    elif prod.kind=='salu':
        if ('s',124) in pw and cons.lds_dma: n=max(n,1)
    if prod.wide_store and set(prod.sdata) & set(cons.wr):
        n=max(n, 2)
    return n

MAXWIN=14
STRICT=False
class Asm:
    def __init__(self):
        self.out=[]
        self.hist=[]
        self.nlabel=0
        self.ninst=0
        self.tnext=0; self.tmfma=0
        self.lq=[]
        self.vq=[]
        self.smem=set()
        self.auto=True
    def raw(self, s): self.out.append(s)
    def comment(self, s): self.out.append('    ; '+s)
    def __call__(self, text, tag=None):
        for line in text.strip().split('\n'):
            line=line.strip()
            if not line or line.startswith(';'):
                continue
            self._emit(line, tag)
    def _need_wait(self, q, regs):
        for i in range(len(q)-1,-1,-1):
            if q[i][0] & regs: return len(q)-1-i
        return None
    def _apply_wait(self, text):
        m=re.search(r'vmcnt\((\d+)\)',text)
        if m:
            n=int(m.group(1))
            if len(self.vq)>n: self.vq=self.vq[len(self.vq)-n:] if n>0 else []
        m=re.search(r'lgkmcnt\((\d+)\)',text)
        if m:
            n=int(m.group(1))
            if n==0: self.smem=set()
            if len(self.lq)>n and not self.smem: self.lq=self.lq[len(self.lq)-n:] if n>0 else []
    def wait_ds_writes(self, tags=None):
        idx=[i for i,e in enumerate(self.lq) if e[1] and (tags is None or e[1] in tags)]
        if idx:
            n=len(self.lq)-1-idx[-1]
            if self.smem: n=0
            self._emit('s_waitcnt lgkmcnt(%d)'%min(n,15))
    def wait_vm_tag(self, tag):
        idx=[i for i,e in enumerate(self.vq) if e[1]==tag]
        if idx:
            n=len(self.vq)-1-idx[-1]
            self._emit('s_waitcnt vmcnt(%d)'%min(n,63))
    def reset_queues(self):
        self.lq=[]; self.vq=[]; self.smem=set()
    def _emit(self, text, tag=None):
        ins=Ins(text)
        if ins.mn=='s_waitcnt':
            self._apply_wait(text)
        elif self.auto:
            regs=set(ins.rd)|set(ins.wr)
            w=[]
            nv=self._need_wait(self.vq, regs)
            if nv is not None: w.append('vmcnt(%d)'%min(nv,63))
            if self.smem & regs: w.append('lgkmcnt(0)')
            else:
                nl=self._need_wait(self.lq, regs)
                if nl is not None: w.append('lgkmcnt(%d)'%(0 if self.smem else min(nl,15)))
            if w: self._emit('s_waitcnt '+' '.join(w))
        if ins.kind=='ds': self.lq.append((set(ins.wr), (tag or True) if not ins.wr else False))
        elif ins.kind=='vmem' and not ins.mn.startswith(('buffer_wbl2','buffer_inv')): self.vq.append((set(ins.wr), tag))
        elif ins.kind=='smem': self.smem|=set(ins.wr)
        pad=0
        H=self.hist
        for k in range(len(H)-1,-1,-1):
            p=H[k]
            nd=need(p,ins)
            if nd:
                t=0; tm=(4*p.passes if (p.kind=='mfma' and not STRICT) else None); tn=4*p.states
                for q in H[k+1:]:
                    t=tn
                    if q.kind=='mfma' and not STRICT:
                        if tm is not None: t=max(t,tm)
                        tm=t+4*q.passes
                    tn=t+4*q.states
                req=4*(nd+1)
                if not (ins.kind=='mfma' and tm is not None and tm>=req):
                    if tn<req: pad=max(pad,(req-tn+3)//4)
        while pad>0:
            k=min(pad,16)
            nop=Ins('s_nop %d'%(k-1)); self.hist.append(nop)
            self.out.append('    s_nop %d'%(k-1)); pad-=k; self.ninst+=1
        self.hist.append(ins); self.out.append('    '+text); self.ninst+=1
        if len(self.hist)>24: self.hist=self.hist[-16:]
    def fence(self):
        pad=0; dist=0
        for p in reversed(self.hist):
            w=0
            if p.kind=='mfma': w=p.passes+4
            elif p.kind=='valu': w=5 if any(r[0]=='s' for r in p.wr) else 2
            elif p.kind=='salu' and ('s',124) in p.wr: w=1
            if p.wide_store: w=max(w,2)
            if w>dist: pad=max(pad,w-dist)
            dist+=p.states
        while pad>0:
            k=min(pad,16)
            self.out.append('    s_nop %d'%(k-1)); pad-=k; self.ninst+=1
        self.hist=[]
    def label(self, name, fence=True):
        if fence: self.fence()
        self.out.append(name+':')
    def branch(self, text, fence=True):
        if fence: self.fence()
        self._emit(text)
    def newlabel(self, base='L'):
        self.nlabel+=1
        return '%s_%d'%(base,self.nlabel)
    def text(self): return '\n'.join(self.out)+'\n'

def v(i,n=1): return 'v%d'%i if n==1 else 'v[%d:%d]'%(i,i+n-1)
def a(i,n=1): return 'a%d'%i if n==1 else 'a[%d:%d]'%(i,i+n-1)
def s(i,n=1): return 's%d'%i if n==1 else 's[%d:%d]'%(i,i+n-1)
```

```python
from asmlib import *
from layout import *
from sched import Region
import sched

L_B0=0x20000; L_B1=0x22000; L_QS=0x24000; L_OE=0x24000; L_KS=0x24800; L_SX=0x25800; L_SM=0x27400; L_Z=0x27800; L_MISC=0x27A00
CHAIN_LDS=0x27B00
MEMF=0; QACC=32; KACC=40; VACC=48; BL=56; BH=60; KXF=64; KMF=72; VXF=76
IDX=84; FLG=85; LW=86; LK=87; EXQ=88; TRL=89; OW=90; OR=91; PST=92; MST=93; T0=94; T1=95
BUF=96; WV=128; WO=192
S_W=3; S_H=4; S_STEP=5
SRD_WS=8; SRD_W=12; SRD_DBG=16
S_T=20
S_GATH=24; S_G2=25; S_MEMW=26; S_M1=27; S_M2=28; S_KVX=29; S_KVM=30; S_W2K=31
S_SEL=32; S_HI8=40; S_C=42; S_FAIL=44; S_RETRY=45
S_PW=72
S_CGE2=76
S_M3=84; S_GL1=85; S_GL2=86; S_FA=91; S_PF=92; S_FB=93; S_XW=87; S_KSW=88; S_SMW=89; S_TRX=90
MAXRETRY=2000000
CFG=dict(ABS=False,NO_DMA=False,NO_EXPORT=False,NO_HOPS=False,M0=None,M1=None)
ABS=['q0','st','g1','g3','md1','md3']
def mark(A,name):
    if CFG.get('ABS') and name in ABS and CFG.get('_p',0)==0:
        i=ABS.index(name)
        regs=[(78,79),(80,81),(82,83),(96,97),(98,99),(100,101)][i]
        A(f's_memtime s[{regs[0]}:{regs[1]}]')
    if CFG['M0']==name: A('s_memtime s[78:79]')
    if CFG['M1']==name: A('s_memtime s[80:81]')
def mark_acc(A):
    if CFG['M0']:
        A('s_waitcnt lgkmcnt(0)\ns_sub_u32 s82, s80, s78\ns_add_u32 s94, s94, s82')

def srd(A, d, lo, size):
    A(f's_mov_b32 s{d}, s{lo}\ns_and_b32 s{d+1}, s{lo+1}, 0xffff\ns_mov_b32 s{d+2}, {size}\ns_mov_b32 s{d+3}, 0x20000')

def chain_setup(A):
    A(f'''
    v_and_b32 v1, 63, v0                 ; lane
    v_and_b32 v2, 15, v1                 ; lo
    v_lshrrev_b32 v3, 4, v1              ; g
    v_lshlrev_b32 v{FLG}, 4, v1
    s_lshl_b32 s{S_T}, s{S_W}, 15
    v_add_u32 v{LW}, s{S_T}, v{FLG}
    v_add_u32 v{LK}, {L_B0}, v{FLG}
    v_mov_b32 v4, 0x4444
    v_mov_b32 v5, 0xeeee
    v_and_b32 v6, 1, v1
    v_cmp_eq_u32 vcc, 0, v6
    v_cndmask_b32 v{IDX}, v5, v4, vcc
    v_cmp_lt_u32 s[{S_HI8}:{S_HI8+1}], 7, v2
    v_lshlrev_b32 v4, 4, v2
    v_lshl_add_u32 v4, v3, 2, v4
    s_lshl_b32 s{S_T}, s{S_W}, 9
    s_add_u32 s{S_T}, s{S_T}, {L_QS}
    v_add_u32 v{EXQ}, s{S_T}, v4
    v_lshrrev_b32 v4, 2, v1
    v_lshlrev_b32 v4, 4, v4
    v_lshl_add_u32 v4, v6, 3, v4
    v_add_u32 v{TRL}, s{S_T}, v4
    v_and_b32 v4, 2, v1
    v_cmp_ne_u32 s[{S_CGE2}:{S_CGE2+1}], 0, v4
    v_and_b32 v7, 7, v2
    v_lshlrev_b32 v4, 4, v3
    v_lshl_add_u32 v4, v7, 1, v4
    v_lshlrev_b32 v4, 4, v4
    v_lshrrev_b32 v5, 3, v2
    v_lshl_add_u32 v4, v5, 3, v4
    s_lshr_b32 s{S_T}, s{S_W}, 1
    s_lshl_b32 s{S_T}, s{S_T}, 10
    s_and_b32 s{S_T+1}, s{S_W}, 1
    s_lshl_b32 s{S_T+1}, s{S_T+1}, 4
    s_add_u32 s{S_T}, s{S_T}, s{S_T+1}
    s_add_u32 s{S_T}, s{S_T}, {L_OE}
    v_add_u32 v{OW}, s{S_T}, v4
    s_lshl_b32 s{S_T}, s{S_W}, 2
    v_add_u32 v{OR}, s{S_T}, v{LK}
    v_mov_b32 v4, 0
    v_mov_b32 v5, 0
    v_mov_b32 v6, 0
    v_mov_b32 v7, 0
    v_lshlrev_b32 v8, 4, v0
    v_add_u32 v8, {L_KS}, v8
    ds_write_b128 v8, v[4:7]
    v_and_b32 v6, 1, v1
    v_and_b32 v7, 7, v2
    v_mov_b32 v4, 0
    v_mov_b32 v5, 0
    v_lshlrev_b32 v8, 3, v1
    v_add_u32 v8, {L_Z}, v8
    ds_write_b64 v8, v[4:5]
    s_lshl_b32 s{S_XW}, s{S_W}, 10
    s_add_u32 s{S_KSW}, s{S_XW}, {L_KS-L_B0//2}
    s_lshl_b32 s{S_SMW}, s{S_W}, 2
    s_mov_b32 s{S_TRX}, {L_Z}
    v_lshrrev_b32 v4, 3, v2
    v_lshlrev_b32 v4, 13, v4
    v_lshrrev_b32 v8, 1, v3
    v_lshl_add_u32 v8, v8, 3, v7
    v_lshl_add_u32 v4, v8, 4, v4
    v_and_b32 v9, 1, v3
    v_lshl_add_u32 v4, v9, 3, v4
    s_lshl_b32 s{S_T}, s{S_W}, 16
    v_add_u32 v{PST}, s{S_T}, v4
    v_lshrrev_b32 v4, 2, v7              ; rho>>1
    v_lshlrev_b32 v4, 1, v4
    v_and_b32 v8, 1, v7
    v_or_b32 v4, v4, v8                  ; rho
    v_lshrrev_b32 v8, 1, v3
    v_lshl_add_u32 v4, v8, 2, v4         ; i
    v_bfe_u32 v8, v7, 1, 1               ; t
    v_lshl_add_u32 v4, v4, 1, v8
    v_lshlrev_b32 v4, 4, v4
    v_lshl_add_u32 v{MST}, v9, 3, v4
    v_lshrrev_b32 v4, 1, v7
    v_cmp_eq_u32 s[{S_SEL}:{S_SEL+1}], 0, v4
    v_cmp_eq_u32 s[{S_SEL+2}:{S_SEL+3}], 1, v4
    v_cmp_eq_u32 s[{S_SEL+4}:{S_SEL+5}], 2, v4
    v_cmp_eq_u32 s[{S_SEL+6}:{S_SEL+7}], 3, v4
    s_mov_b32 s{S_C}, 0x3e0293ee
    s_mov_b32 s{S_RETRY}, 0
    s_mov_b32 s{S_FAIL}, 0
    s_lshl_b32 s{S_T}, s{S_H}, 13
    s_add_u32 s{S_GATH}, s{S_T}, {P_OFF}
    s_add_u32 s{S_G2}, s{S_GATH}, 4096
    s_lshl_b32 s{S_T}, s{S_H}, 8
    s_add_u32 s{S_PW}, s{S_T}, {P_OFF}
    s_add_u32 s{S_PW+1}, s{S_PW}, 16384
    s_add_u32 s{S_PW+2}, s{S_PW}, 32768
    s_add_u32 s{S_PW+3}, s{S_PW}, 49152
    s_add_u32 s{S_MEMW}, s{S_T}, {M_OFF}
    s_mov_b32 s{S_M1}, {M_OFF-L_B0}
    s_mov_b32 s{S_M2}, {M_OFF+4096-L_B0}
    s_mov_b32 s{S_M3}, {M_OFF-16*L_B0}
    s_sub_u32 s{S_GL1}, s{S_GATH}, {L_B0}
    s_sub_u32 s{S_GL2}, s{S_G2}, {L_B0}
    s_lshl_b32 s{S_W2K}, s{S_W}, 11
    ''')

def chain_load_weights(A):
    VG=8; VA=10; VGO=12; VAO=16
    A(f'''
    v_and_b32 v4, 1, v3
    s_and_b32 s{S_T}, s{S_W}, 1
    s_lshl_b32 s{S_T}, s{S_T}, 1
    v_or_b32 v4, s{S_T}, v4
    v_lshlrev_b32 v4, 1, v4
    v_xor_b32 v4, v4, v2
    v_lshlrev_b32 v4, 4, v4
    s_lshl_b32 s{S_T}, s{S_W}, 2
    v_add_u32 v5, s{S_T}, v3
    v_lshl_add_u32 v{VG}, v5, 13, v4
    s_lshl_b32 s{S_T}, s{S_H}, 8
    v_add_u32 v{VG}, s{S_T}, v{VG}
    v_xor_b32 v{VG+1}, 128, v{VG}
    v_bfe_u32 v4, v1, 2, 2               ; r
    v_and_b32 v5, 1, v4                  ; r&1
    v_lshrrev_b32 v6, 1, v4              ; r>>1
    v_and_b32 v7, 1, v3                  ; bq&1
    v_lshrrev_b32 v17, 1, v3             ; bq>>1
    v_lshl_add_u32 v13, v6, 4, v5
    v_lshl_add_u32 v13, v17, 3, v13
    v_lshl_add_u32 v13, v7, 2, v13
    v_lshlrev_b32 v13, 8, v13
    v_and_b32 v14, 3, v1
    v_lshl_add_u32 v13, v14, 3, v13
    v_lshl_add_u32 v15, v7, 1, v5
    v_lshl_add_u32 v15, v6, 2, v15       ; phi
    s_lshl_b32 s{S_T}, s{S_W}, 1
    v_xor_b32 v14, s{S_T}, v15
    v_lshl_add_u32 v{VA}, v14, 5, v13
    v_xor_b32 v{VA+1}, 32, v{VA}
    v_add_u32 v20, 0x10000, v{VA}
    v_add_u32 v21, 0x10000, v{VA+1}
    v_lshl_add_u32 v13, v6, 5, v5
    v_lshl_add_u32 v13, v7, 4, v13
    v_lshl_add_u32 v13, v17, 2, v13
    v_lshlrev_b32 v13, 8, v13
    v_and_b32 v14, 3, v1
    v_lshl_add_u32 v13, v14, 3, v13
    v_lshl_add_u32 v13, v15, 5, v13
    s_lshl_b32 s{S_T}, s{S_W}, 15
    v_add_u32 v{VAO}, s{S_T}, v13
    v_and_b32 v4, 1, v3
    v_lshlrev_b32 v4, 1, v4
    v_xor_b32 v4, v4, v2
    v_lshlrev_b32 v4, 4, v4
    v_lshl_add_u32 v{VGO}, v3, 10, v4
    s_lshl_b32 s{S_T}, s{S_W}, 8
    v_add_u32 v{VGO}, s{S_T}, v{VGO}
    ''')
    A(f's_load_dwordx2 s[46:47], s[0:1], {KA_WQ}\ns_load_dwordx2 s[48:49], s[0:1], {KA_WK}\ns_load_dwordx2 s[50:51], s[0:1], {KA_WV}\ns_load_dwordx2 s[52:53], s[0:1], {KA_WO}\ns_waitcnt lgkmcnt(0)')
    for m in range(4): srd(A, 56+4*m, 46+2*m, 4*MiB)
    A(f's_lshl_b32 s54, s{S_W}, 10')
    def dma_chunk(c):
        m=c//8; f=c%8; slot=c%8
        for j in range(4):
            A(f's_add_u32 m0, s54, {slot*16384+j*4096}')
            A(f's_mov_b32 s{S_T}, {(64*f+16*j)*8192}')
            A(f'buffer_load_dwordx4 v{VG+(j&1)}, s[{56+4*m}:{59+4*m}], s{S_T} offen lds', tag=('c',c))
    def dst(m,j,f):
        if m==0: return ('a', (j*8+f)*8)
        if m==1: return ('a', 128+(j*8+f)*8)
        if j==0: return ('v', WV+f*8)
        return ('v', (96+f*8) if f<4 else (32+(f-4)*8))
    def wo_dma(F):
        for n in range(16):
            x=((n>>2)&3)<<2
            A(f'v_xor_b32 v22, {x*16}, v{VGO}')
            A(f's_lshl_b32 s{S_T}, s{S_W}, 15')
            A(f's_add_u32 m0, s{S_T}, {F*16384+n*1024}')
            A(f's_mul_i32 s{S_T}, s{S_H}, {128*1024}')
            A(f's_add_u32 s{S_T}, s{S_T}, {(64*F+4*n)*1024}')
            A(f'buffer_load_dwordx4 v22, s[68:71], s{S_T} offen lds', tag=('o',F))
    for c in range(7): dma_chunk(c)
    for c in range(24):
        A.wait_vm_tag(('c',c))
        A('s_waitcnt lgkmcnt(0)')
        A('s_barrier')
        if c+7<24: dma_chunk(c+7)
        m=c//8; f=c%8; slot=c%8
        for j in range(2):
            k,b=dst(m,j,f)
            for i in range(4):
                off=slot*16384+(32*(i>>1)+2*(i&1))*256
                reg=VA+j
                if off>=65536: off-=65536; reg=20+j
                A(f'ds_read_b64_tr_b16 {k}[{b+2*i}:{b+2*i+1}], v{reg} offset:{off}')
    A('s_waitcnt lgkmcnt(0)\ns_barrier')
    wo_dma(0); wo_dma(1)
    def wo_read(F,t,base):
        A(f'v_xor_b32 v23, {t*32}, v{VAO}')
        for i in range(4):
            off=F*16384+(8*(i>>1)+2*(i&1))*256
            A(f'ds_read_b64_tr_b16 v[{base+2*i}:{base+2*i+1}], v23 offset:{off}')
    A.wait_vm_tag(('o',0))
    for t in range(4): wo_read(0,t,WO+(t*2+0)*8)
    for t in range(4,8): wo_read(0,t,WO+((t-4)*2+1)*8)
    A('s_waitcnt lgkmcnt(0)')
    for f in range(8):
        k,b=dst(2,1,f)
        A(f'ds_write_b128 v{LW}, v[{b}:{b+3}] offset:{f*2048}')
        A(f'ds_write_b128 v{LW}, v[{b+4}:{b+7}] offset:{f*2048+1024}')
    A('s_waitcnt lgkmcnt(0)')
    for t in range(4):
        for r in range(8): A(f'v_mov_b32 v{32+t*8+r}, v{WO+(t*2+1)*8+r}')
    A.wait_vm_tag(('o',1))
    for t in range(4): wo_read(1,t,WO+(t*2+1)*8)
    for t in range(4,8): wo_read(1,t,96+(t-4)*8)
    A('s_waitcnt lgkmcnt(0)')
    for t in range(4):
        for F in range(2):
            b=(32+t*8) if F==0 else (96+t*8)
            o=16384+(t*2+F)*2048
            A(f'ds_write_b128 v{LW}, v[{b}:{b+3}] offset:{o}')
            A(f'ds_write_b128 v{LW}, v[{b+4}:{b+7}] offset:{o+1024}')
    A('s_waitcnt lgkmcnt(0)')

def buf_ld(slot, ldsidx):
    b=BUF+slot*8
    return [f'ds_read_b128 v[{b}:{b+3}], v{LW} offset:{ldsidx*2048}',
            f'ds_read_b128 v[{b+4}:{b+7}], v{LW} offset:{ldsidx*2048+1024}']

def chain_init_rings(A, st):
    WSR=f's[{SRD_WS}:{SRD_WS+3}]'
    A(f'''
    v_mov_b32 v4, -1
    v_mov_b32 v5, -1
    v_mov_b32 v6, -1
    v_mov_b32 v7, -1
    v_lshlrev_b32 v8, 4, v0
    buffer_store_dwordx4 v[4:7], v8, {WSR}, s{S_GATH} offen{st}
    buffer_store_dwordx4 v[4:7], v8, {WSR}, s{S_G2} offen{st}
    ''')
    A(f's_load_dwordx2 s[46:47], s[0:1], {KA_MEM0}\ns_waitcnt lgkmcnt(0)')
    srd(A, SRD_W, 46, 8192)
    A(f'''
    v_mov_b32 v10, 0
    v_mov_b32 v11, 0
    buffer_store_dwordx2 v[10:11], v{MST}, {WSR}, s{S_MEMW} offen{st}
    v_lshrrev_b32 v9, 1, v2
    v_lshlrev_b32 v9, 10, v9
    v_lshrrev_b32 v10, 1, v3
    v_lshl_add_u32 v9, v10, 6, v9
    v_and_b32 v10, 1, v2
    v_lshl_add_u32 v9, v10, 5, v9
    v_and_b32 v10, 1, v3
    v_lshl_add_u32 v9, v10, 4, v9
    s_lshl_b32 s{S_T}, s{S_W}, 8
    s_add_u32 m0, s{S_W2K}, {L_B1}
    s_nop 0
    buffer_load_dwordx4 v9, s[{SRD_W}:{SRD_W+3}], s{S_T} offen lds
    s_add_u32 m0, s{S_W2K}, {L_B1+1024-128}
    s_nop 0
    buffer_load_dwordx4 v9, s[{SRD_W}:{SRD_W+3}], s{S_T} offen offset:128 lds
    s_waitcnt vmcnt(0)
    ''')
    A.reset_queues()

def idle(A,n):
    while n>0:
        k=min(n,16); A(f's_nop {k-1}'); n-=k
FTH=3; ZA=10; ONEBAR=False; LDPRIO2=500; ITERS=1500; DUMMY=56; SEED=1; SLACK=0; NEAR=0; QPRIO=8; LDPRIO=700; WPRIO=20; VERB=False
FILL=dict(bx_pre=0,bx_post=0,bm_pre=0,bm_post=0,b3_pre=0,b3_post=0)
def fill(A,name):
    for _ in range(FILL[name]): A(f'v_mov_b32 v{IDX}, v{IDX}') if False else A(f'v_mov_b32 v{PST}, v{PST}')
def smf(acc, af, kind, b):
    return f'v_smfmac_f32_16x16x64_bf16 v[{acc}:{acc+3}], v[{af}:{af+3}], {kind}[{b}:{b+7}], v{IDX}'
def emit(A,x):
    if x is None: return
    if callable(x): x()
    else: A(x)
def weave(A, mains, fills, per):
    fills=list(fills)
    for n,m in enumerate(mains):
        emit(A,m)
        k = per[n] if isinstance(per,(list,tuple)) else per
        for _ in range(k):
            if fills: emit(A,fills.pop(0))
    return fills

VST=VXF+6
def export_list(exsc, tmp):
    if CFG['NO_EXPORT']: return []
    WSR=f's[{SRD_WS}:{SRD_WS+3}]'
    return [f's_add_u32 s{S_T+3}, s{S_KVM}, {KM_OFF-L_B0}',
            f'buffer_store_dwordx4 v[{KMF}:{KMF+3}], v{LK}, {WSR}, s{S_T+3} offen{exsc}',
            f's_lshr_b32 s{S_T+3}, s{S_KVM}, 1',
            f's_add_u32 s{S_T+3}, s{S_T+3}, {VM_OFF-L_B0//2}',
            f'buffer_store_dwordx2 v[{VST}:{VST+1}], v{tmp}, {WSR}, s{S_T+3} offen{exsc}']
def stash(A):
    A(f'v_mov_b32 v{VST}, v{VACC}')
    A(f'v_alignbit_b32 v{VST+1}, v{VACC+4}, v{VACC+4}, 16')

def tagacc(p, acc, first, d0, d2):
    if p==0:
        return f'v_or_b32 v{acc}, v{d0}, v{d2}' if first else f'v_or3_b32 v{acc}, v{acc}, v{d0}, v{d2}'
    return f'v_and_b32 v{acc}, v{d0}, v{d2}' if first else f'v_bitop3_b32 v{acc}, v{acc}, v{d0}, v{d2} bitop3:0x80'
def tagcmp(A, p, acc):
    A(f'v_and_b32 v{acc}, 1, v{acc}')
    A(f'v_cmp_ne_u32 vcc, {p}, v{acc}')
def tagset(p, r):
    return f'v_and_b32 v{r}, -2, v{r}' if p==0 else f'v_or_b32 v{r}, 1, v{r}'

def mem_dma(A, lms):
    WSR=f's[{SRD_WS}:{SRD_WS+3}]'
    A(f'v_lshlrev_b32 v{T1}, 4, v{LK}')
    A('s_mov_b32 exec_hi, 0')
    A(f'buffer_load_dword v{T0}, v{T1}, {WSR}, s{S_M3} offen offset:248 sc1')
    A('s_mov_b32 exec_hi, -1')
    A(f's_mov_b32 m0, {lms}')
    for j in range(4): A(f'buffer_load_dwordx4 v{LK}, {WSR}, s{S_M1} offen offset:{j*1024} sc1 lds', tag='md')
    A(f's_mov_b32 m0, {lms+4096}')
    for j in range(4): A(f'buffer_load_dwordx4 v{LK}, {WSR}, s{S_M2} offen offset:{j*1024} sc1 lds', tag='md')

def chain_loop(A, st, exsc, nsteps=64, dbg=True, delayA=0, delayB=0, exsleep=2, flags=False, ldsc=None):
    if ldsc is None: ldsc=exsc
    WSR=f's[{SRD_WS}:{SRD_WS+3}]'
    NH=CFG['NO_HOPS']
    Lend=A.newlabel('Lend')
    Ltop=[A.newlabel('Ltop0'),A.newlabel('Ltop1')]
    Lmd=[A.newlabel('Lmd0'),A.newlabel('Lmd1')]
    tails=[]; ftails=[]
    P0=VXF; P1=VXF+1; P2=VXF+2; P3=VXF+3; AX=VXF
    DPP='row_ror:8 row_mask:0xf bank_mask:0xf'
    def zero_qk():
        for r in range(QACC,KACC+8): A(f'v_mov_b32 v{r}, 0')
    def zero_v():
        for r in range(VACC,VACC+8): A(f'v_mov_b32 v{r}, 0')
    def preaddr():
        A(f'''
        v_mov_b32 v{P2}, s{S_TRX}
        v_cndmask_b32 v{P0}, v{TRL}, v{P2}, s[{S_CGE2}:{S_CGE2+1}]
        v_cndmask_b32 v{P1}, v{P2}, v{TRL}, s[{S_CGE2}:{S_CGE2+1}]
        v_lshlrev_b32 v{P2}, 1, v{EXQ}
        v_add_u32 v{P2}, {L_KS-2*L_QS}, v{P2}
        v_lshrrev_b32 v{P3}, 1, v{LK}
        v_mov_b32 v{BL}, v{P3}
        v_add_u32 v{P3}, s{S_KSW}, v{P3}
        s_max_i32 s{S_T}, s{S_STEP}, 1
        s_sub_u32 s{S_T}, s{S_T}, 1
        v_mov_b32 v{BL+1}, s{S_T}
        ''')
    def vxdma(lds):
        if CFG['NO_DMA']: return []
        return [f's_add_u32 m0, s{S_XW}, {lds}', f's_add_u32 s{S_T}, s{S_KVX}, {VX_OFF-L_B0}',
                f'buffer_load_dwordx4 v{LK}, {WSR}, s{S_T} offen{ldsc} lds',
                f's_add_u32 m0, s{S_XW}, {lds+3072}',
                f'buffer_load_dwordx4 v{LK}, {WSR}, s{S_T} offen offset:1024{ldsc} lds']
    def kxld():
        if CFG['NO_DMA']: return []
        return [f's_add_u32 s{S_T}, s{S_KVX}, {KX_OFF-L_B0}',
                f'buffer_load_dwordx4 v[{KXF}:{KXF+3}], v{LK}, {WSR}, s{S_T} offen{ldsc}',
                f'buffer_load_dwordx4 v[{KXF+4}:{KXF+7}], v{LK}, {WSR}, s{S_T} offen offset:1024{ldsc}']
    def adv():
        A(f's_lshr_b32 s{S_KVM}, s{S_KVX}, 1\ns_add_u32 s{S_KVX}, s{S_KVX}, {32*8192}')
    A(f'''
    s_mov_b32 s{S_STEP}, 0
    s_lshl_b32 s{S_KVX}, s{S_H}, 13
    s_add_u32 s{S_KVX}, s{S_KVX}, s{S_W2K}
    s_mov_b32 s{S_KVM}, {128*MiB}
    ''')
    def flagwait(lab_back=None):
        L=A.newlabel('Lfw'); L2=A.newlabel('Lfw2')
        A.label(L)
        A.reset_queues()
        A(f'buffer_load_dword v{FLG}, off, {WSR}, s{S_FA} sc1')
        A('s_waitcnt vmcnt(0)')
        A(f'v_cmp_gt_u32 vcc, {FTH}, v{FLG}')
        A(f's_add_u32 s{S_RETRY}, s{S_RETRY}, 1')
        A(f's_cmp_gt_u32 s{S_RETRY}, {MAXRETRY*100}')
        A.branch(f's_cbranch_scc1 {L2}', fence=False)
        A('s_sleep 2')
        A.branch(f's_cbranch_vccnz {L}', fence=False)
        A.label(L2)
    if flags:
        A(f's_lshl_b32 s{S_FA}, s{S_H}, 2\ns_add_u32 s{S_FA}, s{S_FA}, {F1_OFF}\ns_mov_b32 s{S_FB}, s{S_FA}')
        A(f's_lshl_b32 s{S_PF}, s{S_H}, 7\ns_add_u32 s{S_PF}, s{S_PF}, {F3_OFF}')
        flagwait()
    sv=CFG['NO_DMA']; CFG['NO_DMA']=False
    for x in kxld()+vxdma(L_B0): A(x)
    if sv:
        for x in vxdma(L_B1): A(x)
    CFG['NO_DMA']=sv
    for i in range(4):
        for x in buf_ld(i,i): A(x)
    zero_qk(); zero_v(); preaddr()
    A('s_waitcnt vmcnt(0) lgkmcnt(0)')
    A.branch(f's_branch {Ltop[0]}')
    for p in range(2):
        LMS = L_B1 if p==0 else L_B0
        LVX = L_B0 if p==0 else L_B1
        Lfail=A.newlabel('Lfail'); Lq=A.newlabel('Lq'); Lqok=A.newlabel('Lqok'); Lw0=A.newlabel('Lw0')
        Lpr=A.newlabel('Lpr')
        A.label(Lmd[p])
        A.reset_queues()
        CFG['_p']=1-p
        mark(A,'md0')
        idle(A,delayA)
        mem_dma(A,LMS)
        mark(A,'md1')
        preaddr()
        A('s_mov_b32 exec_hi, 0')
        tagcmp(A,p,T0)
        A('s_mov_b32 exec_hi, -1')
        if not NH: A.branch(f's_cbranch_vccnz {Lpr}', fence=False)
        mark(A,'md2')
        A.wait_vm_tag('md')
        A.label(Ltop[p], fence=False)
        A.reset_queues()
        A('s_waitcnt lgkmcnt(0)')
        mark(A,'md3')
        A('s_barrier')
        mark_acc(A)
        CFG['_p']=p
        mark(A,'q0')
        A.label(Lq, fence=False)
        SXA=QACC; SM=KACC; SXo=L_SX-L_B0
        def wb(nm, tags):
            A.wait_ds_writes(tags); A('s_barrier'); mark(A,nm)
        def chkbr():
            if not NH: A.branch(f's_cbranch_vccnz {Lfail}', fence=False)
            A.label(Lqok, fence=False)
            mark(A,'chk')
        Lfl=A.newlabel('Lfl'); Lflb=A.newlabel('Lflb')
        def flbr():
            if flags:
                A.branch(f's_cbranch_vccnz {Lfl}', fence=False)
                A.label(Lflb, fence=False)
        if flags: ftails.append((Lfl,Lflb))
        def E(*xs):
            for x in xs:
                if x is None: continue
                if isinstance(x,(list,tuple)): E(*x)
                elif callable(x): x()
                else: A(x)
        mr=[f'ds_read_b128 v[{MEMF+4*f}:{MEMF+4*f+3}], v{LK} offset:{LMS-L_B0+f*1024}' for f in range(8)]
        Q=[smf(QACC+4*j, MEMF+4*f, 'a', (j*8+f)*8) for f in range(8) for j in range(2)]
        K=[smf(KACC+4*j, MEMF+4*f, 'a', 128+(j*8+f)*8) for f in range(8) for j in range(2)]
        tg=[tagacc(p,T0,f==0,MEMF+4*f,MEMF+4*f+2) for f in range(8)]
        ex_=export_list(exsc,BL) or [None]*5
        prog=None
        def adds(acc): return [f'v_add_f32 v{acc+2*i}, v{acc+2*i}, v{acc+2*i+1}' for i in range(4)]
        def cvts(acc): return [f'v_cvt_pk_bf16_f32 v{acc}, v{acc}, v{acc+2}', f'v_cvt_pk_bf16_f32 v{acc+4}, v{acc+4}, v{acc+6}']
        W0='s_waitcnt lgkmcnt(0)'
        E(mr[:5])
        E(Q[0], mr[5]); E(Q[1], mr[6]); E(Q[2], mr[7]); E(Q[3], ex_[0], ex_[1]); E(Q[4], ex_[2], ex_[3]); E(Q[5], ex_[4]); E(Q[6], prog)
        E(Q[7], f's_lshr_b32 s{S_KVM}, s{S_KVX}, 1', f's_add_u32 s{S_KVX}, s{S_KVX}, {32*8192}', W0)
        for n in range(8): E(Q[8+n], tg[n])
        qa=adds(QACC); qc=cvts(QACC); ka=adds(KACC); kc=cvts(KACC)
        kl=kxld() or [None]*3
        fl=[None]*6
        if flags:
            fl=[f's_add_u32 s{S_T+1}, s{S_STEP}, 2',f's_min_u32 s{S_T+1}, s{S_T+1}, 63',f's_lshr_b32 s{S_T+1}, s{S_T+1}, 2',f's_lshl_b32 s{S_T+1}, s{S_T+1}, 7',
                f's_add_u32 s{S_FA}, s{S_T+1}, s{S_FB}', f'buffer_load_dword v{FLG}, off, {WSR}, s{S_FA} sc1']
        E(K[0], f'v_and_b32 v{T0}, 1, v{T0}')
        E(K[1], f'v_cmp_ne_u32 vcc, {p}, v{T0}')
        E(K[2], qa[0]); E(K[3], chkbr, qa[1]); E(K[4], kl[0], qa[2]); E(K[5], fl[0], fl[1], qa[3]); E(K[6], fl[2], fl[3], qc[0]); E(K[7], qc[1])
        E(K[8], 's_nop 0', f'ds_write2_b32 v{EXQ}, v{QACC}, v{QACC+4} offset0:0 offset1:64', f'ds_read_b64_tr_b16 v[{BL}:{BL+1}], v{P0}')
        E(K[9], f'ds_read_b64_tr_b16 v[{BL+2}:{BL+3}], v{P0} offset:256', f'ds_read_b64_tr_b16 v[{BH}:{BH+1}], v{P1}', f'ds_read_b64_tr_b16 v[{BH+2}:{BH+3}], v{P1} offset:256')
        E(K[10], f'v_add_u32 v{AX}, s{S_XW}, v{LK}')
        E(K[11], f'v_cmp_gt_u32 vcc, {FTH}, v{FLG}' if flags else None)
        E(K[12])
        E(K[13], flbr, fl[4])
        E(K[14], fl[5]); E(K[15], W0)
        E(f'v_mfma_f32_16x16x32_bf16 v[{SXA}:{SXA+3}], v[{KXF}:{KXF+3}], v[{BL}:{BL+3}], 0', ka[0], ka[1])
        E(f'v_mfma_f32_16x16x32_bf16 v[{SXA}:{SXA+3}], v[{KXF+4}:{KXF+7}], v[{BH}:{BH+3}], v[{SXA}:{SXA+3}]', kc[0], ka[2], ka[3], kc[1])
        mark(A,'s0')
        def VL(i): return smf(VACC+4,MEMF+4*i,'v',BUF+8*(i%4))
        def VR(i): return smf(VACC,MEMF+4*i,'v',WV+8*i)
        bl=[buf_ld(i,i+4) for i in range(4)]+[buf_ld(i,8+i) for i in range(4)]
        XP=[QACC+4, KACC+4, VXF+4]
        xr=[f'ds_read_b128 v[{d}:{d+3}], v{LK} offset:{SXo+1024*n}' for n,d in enumerate([SXA]+XP)]
        xa=[f'v_add_f32 v{SXA+r}, v{SXA+r}, v{XP[0]+r}' for r in range(4)]+[f'v_add_f32 v{XP[1]+r}, v{XP[1]+r}, v{XP[2]+r}' for r in range(4)]+[f'v_add_f32 v{SXA+r}, v{SXA+r}, v{XP[1]+r}' for r in range(4)]
        vd=[x.replace(f's{S_T},',f's{S_T+2},').replace(f's{S_T} ',f's{S_T+2} ') for x in vxdma(LMS)] or [None]*5
        z=[f'v_mov_b32 v{MEMF+r}, 0' for r in range(32)]
        E(VL(0), 's_nop 0', f'ds_write2_b32 v{P2}, v{KACC}, v{KACC+4} offset0:0 offset1:128', f'ds_read_b64_tr_b16 v[{KMF}:{KMF+1}], v{P3}')
        E(VR(0), f'ds_read_b64_tr_b16 v[{KMF+2}:{KMF+3}], v{P3} offset:512')
        E(VL(1))
        A(f'ds_write_b128 v{AX}, v[{SXA}:{SXA+3}] offset:{SXo}', tag='sxw')
        E(VR(1), bl[0][0], z[0])
        E(VL(2), 's_waitcnt lgkmcnt(2)', bl[0][1])
        E(f'v_mfma_f32_16x16x32_bf16 v[{SM}:{SM+3}], v[{KMF}:{KMF+3}], v[{BL}:{BL+3}], 0', bl[1][0], z[1])
        E(f'v_mfma_f32_16x16x32_bf16 v[{SM}:{SM+3}], v[{KMF}:{KMF+3}], v[{BH}:{BH+3}], v[{SM}:{SM+3}]', z[2], z[3])
        E(VR(2))
        wb('bx',('sxw',))
        E(xr[0], xr[1])
        E(VL(3), xr[2], xr[3], f'v_cndmask_b32 v{SM}, v{SM}, v{SM+1}, s[{S_HI8}:{S_HI8+1}]')
        E(VR(3), vd[0])
        A(f'ds_write_b32 v{OR}, v{SM} offset:{L_SM-L_B0}', tag='smw')
        E(bl[1][1])
        E(VR(4), bl[2][0], bl[2][1])
        E(VR(5), kl[1], bl[3][0])
        E(VR(6), bl[3][1], xa[0], xa[1], xa[2], xa[3])
        E(VR(7), xa[4], xa[5], xa[6], xa[7])
        E(VL(4))
        wb('bm',('smw',))
        MP=KACC
        E(f'ds_read_b128 v[{MP}:{MP+3}], v{LK} offset:{L_SM-L_B0}')
        E(VL(5), f'ds_read_b64 v[{VXF+6}:{VXF+7}], v{AX} offset:{LVX-L_B0+4096}', f'ds_read_b64 v[{VXF+4}:{VXF+5}], v{AX} offset:{LVX-L_B0+4096+8}', xa[8])
        E(VL(6), kl[2], f'ds_read_b128 v[{VXF}:{VXF+3}], v{AX} offset:{LVX-L_B0}', xa[9], xa[10])
        E(VL(7), vd[1], vd[2], bl[4][0], bl[4][1], xa[11], f'v_max3_f32 v{T0}, v{SXA}, v{SXA+1}, v{SXA+2}')
        va=adds(VACC)
        E(f'v_add_f32 v{MP}, v{MP}, v{MP+1}', f'v_add_f32 v{MP+2}, v{MP+2}, v{MP+3}', f'v_add_f32 v{SM}, v{MP}, v{MP+2}', f'v_max3_f32 v{T0}, v{T0}, v{SXA+3}, v{SM}')
        E(va[0], va[1])
        E(f'v_max_f32_dpp v{T0}, v{T0}, v{T0} {DPP}', f'v_mov_b32 v{T1}, v{T0}')
        E(f'v_cvt_pk_bf16_f32 v{VACC}, v{VACC}, v{VACC+2}', f'v_mov_b32 v{VACC+1}, 0')
        E(f'v_permlane32_swap_b32 v{T0}, v{T1}', f'v_max_f32 v{T0}, v{T0}, v{T1}', f'v_mov_b32 v{T1}, v{T0}')
        E(va[2], va[3])
        E(f'v_permlane16_swap_b32 v{T0}, v{T1}', f'v_max_f32 v{T0}, v{T0}, v{T1}', f'v_mul_f32 v{T0}, s{S_C}, v{T0}')
        mark(A,'mx')
        PB=KACC+4; PM=KACC+2; OA=BL; OB=BH
        fm=lambda r: f'v_fma_f32 v{r}, v{r}, s{S_C}, -v{T0}'
        ex=lambda r: f'v_exp_f32 v{r}, v{r}'
        E(fm(SXA), fm(SXA+1), ex(SXA), ex(SXA+1), fm(SXA+2), fm(SXA+3), f'v_cvt_pk_bf16_f32 v{PB}, v{SXA}, v{SXA+1}', ex(SXA+2), ex(SXA+3), fm(SM))
        E(f'v_cvt_pk_bf16_f32 v{PB+1}, v{SXA+2}, v{SXA+3}', f'v_mov_b32_dpp v{PB+2}, v{PB} {DPP}', ex(SM), f'v_mov_b32_dpp v{PB+3}, v{PB+1} {DPP}')
        E(f'v_cvt_pk_bf16_f32 v{VACC+4}, v{VACC+6}, v{VACC+4}', f'v_mov_b32_dpp v{SM+1}, v{SM} {DPP}', f'v_mov_b32 v{VACC+5}, 0')
        E(f'v_cvt_pk_bf16_f32 v{PM}, v{SM}, v{SM+1}')
        E(f'v_mfma_f32_16x16x32_bf16 v[{OA}:{OA+3}], v[{VXF}:{VXF+3}], v[{PB}:{PB+3}], 0', vd[3], bl[5][0], f'v_mov_b32 v{PM+1}, 0')
        E(f'v_mfma_f32_16x16x32_bf16 v[{OB}:{OB+3}], v[{VXF+4}:{VXF+7}], v[{PB}:{PB+3}], 0', f'v_add_f32 v{SXA}, v{SXA}, v{SXA+1}', f'v_add_f32 v{SXA+2}, v{SXA+2}, v{SXA+3}')
        E(f'v_mfma_f32_16x16x16_bf16 v[{OA}:{OA+3}], v[{VACC}:{VACC+1}], v[{PM}:{PM+1}], v[{OA}:{OA+3}]', f'v_add_f32 v{SXA}, v{SXA}, v{SM}', f'v_add_f32 v{T0}, v{SXA}, v{SXA+2}')
        E(f'v_mfma_f32_16x16x16_bf16 v[{OB}:{OB+3}], v[{VACC+4}:{VACC+5}], v[{PM}:{PM+1}], v[{OB}:{OB+3}]')
        if p==1: A(f's_cmp_eq_u32 s{S_STEP}, {nsteps-1}')
        else: A('s_nop 0')
        E(bl[5][1], bl[6][0])
        E(f'v_add_f32_dpp v{T0}, v{T0}, v{T0} {DPP}', f'v_mov_b32 v{T1}, v{T0}', z[4], z[5])
        E(f'v_permlane32_swap_b32 v{T0}, v{T1}', f'v_add_f32 v{T0}, v{T0}, v{T1}', f'v_mov_b32 v{T1}, v{T0}')
        sel=[f'v_cndmask_b32 v{OA+r}, v{OA+r}, v{OB+r}, s[{S_HI8}:{S_HI8+1}]' for r in range(4)]
        E(sel[0], sel[1])
        E(f'v_permlane16_swap_b32 v{T0}, v{T1}', f'v_add_f32 v{T0}, v{T0}, v{T1}', f'v_rcp_f32 v{T0}, v{T0}', sel[2], sel[3])
        OP=QACC
        E([f'v_mul_f32 v{OA+r}, v{OA+r}, v{T0}' for r in range(4)])
        E(f'v_cvt_pk_bf16_f32 v{OP}, v{OA}, v{OA+1}', f'v_cvt_pk_bf16_f32 v{OP+1}, v{OA+2}, v{OA+3}')
        dm=lambda r: f'v_mfma_f32_16x16x4_f32 v[{r}:{r+3}], v{IDX}, v{IDX}, 0'
        E(dm(KACC))
        if p==1: A.branch(f's_cbranch_scc1 {Lend}', fence=False)
        else: A('s_nop 0')
        A(f'ds_write_b64 v{OW}, v[{OP}:{OP+1}]', tag='ow')
        E(bl[6][1], bl[7][0], vd[4])
        mark(A,'pv')
        E(z[6:6+ZA])
        E(dm(KACC+4), bl[7][1])
        wb('b3',('ow',))
        OF=BL
        E(f'ds_read_b128 v[{OF}:{OF+3}], v{LK} offset:{L_OE-L_B0}', f'ds_read_b128 v[{OF+4}:{OF+7}], v{LK} offset:{L_OE-L_B0+1024}')
        E(z[6+ZA:28], f'v_mov_b32 v{VST}, v{VACC}', f'v_alignbit_b32 v{VST+1}, v{VACC+4}, v{VACC+4}, 16')
        def W(t,F):
            if t<4: return smf(MEMF+4*t,OF+4*F,'v',WO+(t*2+F)*8)
            li=(t-4)*2+F
            return smf(MEMF+4*t,OF+4*F,'v',BUF+8*(li%4))
        def epi(pp):
            xa_=MEMF+8*pp; tmp=QACC+2*pp
            return adds(xa_)+[f'v_cvt_pk_bf16_f32 v{tmp}, v{xa_}, v{xa_+2}', tagset(p,tmp), f'v_cvt_pk_bf16_f32 v{tmp+1}, v{xa_+4}, v{xa_+6}',
                    f'buffer_store_dwordx2 v[{tmp}:{tmp+1}], v{PST}, {WSR}, s{S_PW+pp} offen{st}']
        r=[buf_ld(i,12+i) for i in range(4)]
        e2=epi(2); e0=epi(0); e1=epi(1); e3=epi(3)
        E(W0)
        E(W(4,0), z[28]); E(W(5,0), r[0][0], z[29]); E(W(4,1), r[0][1], z[30]); E(W(5,1), r[1][0], z[31])
        E(W(0,0), r[1][1], e2[0]); E(W(1,0), r[2][0], e2[1]); E(W(0,1), r[2][1], e2[2], e2[3]); E(W(1,1), r[3][0], e2[4], e2[5])
        E(W(2,0), r[3][1], e2[6], e0[0]); E(W(3,0), 's_nop 0', e2[7], e0[1]); E(W(2,1), e0[2], e0[3]); E(W(3,1), 's_waitcnt lgkmcnt(4)', e0[4], e0[5])
        E(W(6,0), e0[6], e1[0]); E(W(6,1), W0, e0[7], e1[1]); E(W(7,0), e1[2], e1[3]); E(W(7,1), e1[4], e1[5], e1[6])
        E(e3[0], e3[1], e3[4], e3[5]); E(e1[7]); E(e3[2], e3[3], e3[6], e3[7])
        A(f's_add_u32 s{S_STEP}, s{S_STEP}, 1')
        A(f's_cmp_eq_u32 s{S_W}, 0')
        mark(A,'st')
        A.branch(f's_cbranch_scc1 {Lw0}', fence=False)
        sv=(list(A.lq),list(A.vq),set(A.smem))
        for i in range(4):
            for x in buf_ld(i,i): A(x)
        zero_qk(); zero_v(); preaddr()
        A('s_waitcnt vmcnt(0)')
        A.branch(f's_branch {Ltop[1-p]}')
        A.label(Lw0)
        A.lq,A.vq,A.smem=sv
        idle(A,delayB)
        Lg0=A.newlabel('Lg0'); Lgr=A.newlabel('Lgr'); Lgo=A.newlabel('Lgo')
        gld=[f'buffer_load_dwordx4 v[{MEMF+4*t}:{MEMF+4*t+3}], v{LK}, {WSR}, s{S_GL1 if t<4 else S_GL2} offen offset:{(t%4)*1024} sc1' for t in range(8)]
        for x in gld: A(x)
        mark(A,'g1')
        for i in range(4):
            for x in buf_ld(i,i): A(x)
        SEL=BL; RA=BH; RO=VXF+4
        A(f'''
        v_and_b32 v{T0}, 16, v{LK}
        v_mov_b32 v{T1}, 0x3f80
        v_lshlrev_b32 v{T0}, v{T0}, v{T1}
        ''')
        for j in range(4): A(f'v_cndmask_b32 v{SEL+j}, 0, v{T0}, s[{S_SEL+2*j}:{S_SEL+2*j+1}]')
        zero_qk(); zero_v()
        A.label(Lg0, fence=False)
        for t in range(8):
            m=MEMF+4*t
            c='0' if t==0 else f'v[{RA}:{RA+3}]'
            A(f'v_mfma_f32_16x16x32_bf16 v[{RA}:{RA+3}], v[{m}:{m+3}], v[{SEL}:{SEL+3}], {c}')
            A(tagacc(p,T0,t==0,m,m+2))
            if t==0: mark(A,'g2')
        tagcmp(A,p,T0)
        if not NH: A.branch(f's_cbranch_vccnz {Lgr}', fence=False)
        A.label(Lgo, fence=False)
        mark(A,'g3')
        A(f'v_cvt_pk_bf16_f32 v{RO}, v{RA}, v{RA+1}')
        A(f'v_cvt_pk_bf16_f32 v{RO+1}, v{RA+2}, v{RA+3}')
        A(tagset(1-p,RO))
        A(f'buffer_store_dwordx2 v[{RO}:{RO+1}], v{MST}, {WSR}, s{S_MEMW} offen{st}')
        if dbg:
            A(f'''
            s_lshl_b32 s{S_T}, s{S_STEP}, 13
            s_lshl_b32 s{S_T+2}, s{S_H}, 8
            s_add_u32 s{S_T}, s{S_T}, s{S_T+2}
            s_add_u32 s{S_T}, s{S_T}, {MH_OFF}
            buffer_store_dwordx2 v[{RO}:{RO+1}], v{MST}, {WSR}, s{S_T} offen
            ''')
        if p==1: A.branch(f's_branch {Lmd[0]}', fence=False)
        tails.append((p,LMS,Lgr,Lg0,Lgo,gld,Lpr,Lfail,Lqok,Lq))
    for (p,LMS,Lgr,Lg0,Lgo,gld,Lpr,Lfail,Lqok,Lq) in tails:
        A.label(Lgr)
        A.reset_queues()
        A(f's_add_u32 s{S_RETRY}, s{S_RETRY}, 1')
        A(f's_cmp_gt_u32 s{S_RETRY}, {MAXRETRY*100}')
        A.branch(f's_cbranch_scc1 {Lgo}', fence=False)
        A.auto=False
        for ld in gld: A(ld)
        A.auto=True
        A.branch(f's_branch {Lg0}')
        A.label(Lpr)
        A.reset_queues()
        Lp2=A.newlabel('Lp2')
        A(f's_add_u32 s{S_RETRY}, s{S_RETRY}, 0x100')
        A(f's_cmp_gt_u32 s{S_RETRY}, {MAXRETRY*100}')
        A.branch(f's_cbranch_scc1 {Lp2}', fence=False)
        mem_dma(A,LMS)
        A('s_mov_b32 exec_hi, 0')
        tagcmp(A,p,T0)
        A('s_mov_b32 exec_hi, -1')
        A.branch(f's_cbranch_vccnz {Lpr}', fence=False)
        A.label(Lp2)
        A('s_waitcnt vmcnt(0)')
        A.branch(f's_branch {Ltop[p]}')
        A.label(Lfail)
        A.reset_queues()
        A(f's_cmp_eq_u32 s{S_STEP}, 0')
        A.branch(f's_cbranch_scc1 {Lqok}', fence=False)
        A(f's_add_u32 s{S_RETRY}, s{S_RETRY}, 0x10000')
        A(f's_add_u32 s{S_FAIL}, s{S_FAIL}, 1')
        A(f's_cmp_gt_u32 s{S_FAIL}, {MAXRETRY}')
        A.branch(f's_cbranch_scc1 {Lqok}', fence=False)
        A('s_waitcnt lgkmcnt(0)\ns_barrier')
        Lf2=A.newlabel('Lf2')
        A(f's_sub_u32 s{S_KVX}, s{S_KVX}, {32*8192}')
        A(f's_mov_b32 s{S_KVM}, {128*MiB}')
        preaddr()
        A(f's_cmp_lg_u32 s{S_W}, 0')
        A.branch(f's_cbranch_scc1 {Lf2}')
        mem_dma(A,LMS)
        A.label(Lf2)
        A.reset_queues()
        for r in range(QACC,KACC+8): A(f'v_mov_b32 v{r}, 0')
        A('s_waitcnt vmcnt(0)\ns_barrier')
        A.branch(f's_branch {Lq}')
    for (Lfl,Lflb) in ftails:
        A.label(Lfl)
        flagwait()
        A.branch(f's_branch {Lflb}')
    A.label(Lend)
    A.reset_queues()
    A('s_waitcnt lgkmcnt(0)')
    stash(A)
    A(f'v_lshrrev_b32 v{T1}, 1, v{LK}')
    for x in export_list(exsc,T1): A(x)
```

```python
from asmlib import *
import random
LDS_LAT=72; LDS_WLAT=72; BAR=16; MARGIN=4; RAMP=128
class Op:
    def __init__(self, texts, idx, fn=None, name=None, after=(), mem=None, prio=0):
        self.texts=texts; self.idx=idx; self.fn=fn; self.name=name; self.after=list(after); self.mem=mem
        self.ins=[Ins(t) for t in texts]
        self.rd=set(); self.wr=set()
        for i in self.ins:
            self.rd|=set(i.rd)-self.wr; self.wr|=set(i.wr)
        self.kind=self.ins[-1].kind if self.ins else 'special'
        self.k0=self.ins[0].kind if self.ins else 'special'
        self.smf=bool(self.ins) and self.ins[0].mn.startswith('v_smfmac')
        self.slow=bool(self.ins) and (self.ins[0].mn.startswith('v_permlane') or self.ins[0].mn in TRANS)
        self.preds={}; self.succs=[]; self.cp=0; self.prio=prio; self.cost=4
def lat(p,c,reg):
    if not p.ins or not c.ins: return 4*max(1,len(p.ins))
    a=p.ins[-1]
    n=max(need(a,x) for x in c.ins)
    l=4*(n+1)
    if reg is not None and reg in a.wr:
        if a.kind=='ds': l=max(l,LDS_LAT)
        if a.kind=='vmem': l=max(l,300)
    return l
class Region:
    def __init__(self, A): self.A=A; self.ops=[]; self.names={}
    def __call__(self, text, name=None, after=(), mem=None, prio=0):
        for line in text.strip().split('\n'):
            line=line.strip()
            if line and not line.startswith(';'): self.group([line],name,after,mem,prio)
    def group(self, texts, name=None, after=(), mem=None, prio=0):
        op=Op(texts,len(self.ops),name=name,after=after,mem=mem,prio=prio); self.ops.append(op)
        if name: self.names.setdefault(name,[]).append(op)
        return op
    def special(self, fn, name, after=(), rd=(), wr=(), cost=4):
        op=Op([],len(self.ops),fn=fn,name=name,after=after); op.rd=set(rd); op.wr=set(wr); op.cost=cost
        self.ops.append(op); self.names.setdefault(name,[]).append(op); return op
    def build(self):
        ops=self.ops; lastw={}; readers={}; lastmem={}
        def dep(p,c,l):
            if p is c: return
            c.preds[p]=max(c.preds.get(p,0),l)
        for o in ops:
            for r in o.rd:
                if r in lastw: dep(lastw[r],o,lat(lastw[r],o,r))
            for r in o.wr:
                if r in lastw: dep(lastw[r],o,lat(lastw[r],o,r))
                for x in readers.get(r,[]): dep(x,o,lat(x,o,None))
            for r in o.rd: readers.setdefault(r,[]).append(o)
            for r in o.wr: lastw[r]=o; readers[r]=[]
            if o.mem:
                if o.mem in lastmem: dep(lastmem[o.mem],o,4)
                lastmem[o.mem]=o
            for n in o.after:
                l=None
                if isinstance(n,tuple): n,l=n
                for p in self.names[n]:
                    if p.idx<o.idx: dep(p,o,l if l is not None else max(4,p.cost))
        for o in ops:
            o.dsp=[p for p in o.preds if p.kind=='ds' and (p.wr & (o.rd|o.wr))]
            for p,l in o.preds.items(): p.succs.append((o,l))
    def prios(self, rng, noise, chainw):
        for o in reversed(self.ops):
            c=0
            for s_,l in o.succs:
                if o.kind=='mfma' and s_.kind=='mfma' and l<16: l=chainw
                c=max(c,l+s_.cp0)
            o.cp0=c+o.prio
        for o in self.ops: o.cp=o.cp0+(rng.gauss(0,noise) if noise else 0)
    def schedule(self, tol):
        ops=self.ops
        npred={o:len(o.preds) for o in ops}
        ready=[o for o in ops if not o.preds]
        tiss={}; dep_e={o:0 for o in ready}
        t=0; tV=-100; tSM=-100; tMF=-100; tM=-100; ldsfree=0; tVec=-1000; Wend=-1
        order=[]; waited=-1; dsseq={}; nds=0; tCov=-1000
        while ready:
            cand=[]
            for o in ready:
                e=max(t,dep_e[o]); k=o.k0
                if any(dsseq[p]>waited for p in o.dsp): e=max(e,t+4)
                if k=='valu': e=max(e,tSM+12,tMF+8)
                elif k=='mfma': e=max(e,tM+16)
                elif k in('ds','vmem'):
                    e=max(e,tV+12)
                    if k=='ds': e=max(e,ldsfree-32)
                if k in('valu','mfma') and e<Wend: e=max(e,min(tVec+16,Wend))
                cand.append((-o.cp,o.idx,e,o))
            cand.sort()
            best=cand[0]; higher=[cand[0]]
            for c in cand[1:]:
                o=c[3]; e=c[2]
                if e<best[2]:
                    dur=8 if o.slow else (4*len(o.ins) if o.ins else o.cost)
                    if o.kind=='vmem': dur+=8
                    if o.ins and o.ins[0].mn=='ds_write_b128': dur=24
                    ok=True
                    for h in higher:
                        hk=h[3].k0; blk=e+dur
                        if o.k0=='mfma':
                            if hk=='valu': blk=max(blk,e+(12 if o.smf else 8))
                            elif hk=='mfma': blk=max(blk,e+4*o.ins[0].passes)
                        if o.k0=='valu' and hk in('ds','vmem'): blk=max(blk,e+12)
                        if o.k0 in('valu','mfma') and hk in('valu','mfma') and (e<Wend or e>tCov): blk=max(blk,e+16)
                        if blk>h[2]+(tol if o.k0=='mfma' else 0): ok=False; break
                    if ok: best=c
                higher.append(c)
                if len(higher)>24: break
            o=best[3]; e=best[2]
            ready.remove(o)
            for p in o.dsp: waited=max(waited,dsseq[p])
            tiss[o]=e; tt=e
            for i in o.ins:
                if i.kind in('valu','mfma'):
                    if tt>tCov: Wend=tt+RAMP
                    tVec=tt; tCov=max(tCov,tt+(4*i.passes if i.kind=='mfma' else (8 if o.slow else 4))+16-MARGIN)
                if i.kind=='valu':
                    tt=max(tt,tSM+12,tMF+8); tV=tt; tiss[o]=tt
                    tt+=8 if (i.mn.startswith('v_permlane') or i.mn in TRANS) else 4
                elif i.kind=='mfma':
                    tt=max(tt,tM+16); tM=tt+4*i.passes-16; tiss[o]=tt
                    if i.mn.startswith('v_smfmac'): tSM=tt
                    else: tMF=tt
                    tt+=4
                elif i.kind in('ds','vmem'):
                    tt=max(tt,tV+12)
                    if i.kind=='ds':
                        sz=16 if 'b128' in i.mn else 8
                        if 'write' in i.mn: sz*=2
                        ldsfree=max(ldsfree,tt)+sz
                        dsseq[o]=nds; nds+=1
                        tiss[o]=max(tt,ldsfree-sz)
                    else: tiss[o]=tt
                    tt+=(24 if i.mn=='ds_write_b128' else (8 if 'write' in i.mn else 4)) if i.kind=='ds' else 12
                else:
                    tiss[o]=tt; tt+=4
            if not o.ins:
                tt=e+o.cost
                if o.name and o.name.startswith('b'): waited=nds-1 if False else waited
            t=tt
            order.append(o)
            for c,l in o.succs:
                dep_e[c]=max(dep_e.get(c,0),tiss[o]+l)
                npred[c]-=1
                if npred[c]==0: ready.append(c)
        assert len(order)==len(ops)
        self._tiss=tiss
        return t,order
    def search(self, iters, seed):
        self.build()
        rng=random.Random(seed)
        best=None
        for chainw in (16,24,32,40):
            for tol in (0,4,8,12,16):
                self.prios(rng,0,chainw)
                t,order=self.schedule(tol)
                if best is None or t<best[0]: best=(t,order,chainw,tol,dict(self._tiss))
        chainw,tol=best[2],best[3]
        self.prios(rng,0,chainw)
        off={o:0.0 for o in self.ops}
        cur=best[0]
        for it in range(iters):
            T=12.0*(1-it/iters)+0.5
            k=rng.choice((1,1,2,4,8))
            ch=rng.sample(self.ops,k)
            old=[off[o] for o in ch]
            for o in ch: off[o]+=rng.gauss(0,60)
            for o in self.ops: o.cp=o.cp0+off[o]
            t,order=self.schedule(tol)
            if t<=cur or rng.random()<pow(2.718,-(t-cur)/T):
                cur=t
                if t<best[0]: best=(t,order,chainw,tol,dict(self._tiss))
            else:
                for o,v in zip(ch,old): off[o]=v
        return best
    def emit(self, iters=1500, seed=1):
        best=self.search(iters,seed)
        self.times={o.name:best[4][o] for o in best[1] if o.fn}
        for o in best[1]:
            if o.fn: o.fn()
            else:
                for x in o.texts: self.A(x, tag=o.name)
        return best[0],best[2:4]
```

```python
from asmlib import *
from layout import *
S2_LDS=0x20000+0x4000+0x100
L_OE=0x20000; L_MISC=0x24000
QF=160; KX0=176; KX1=192; VX=208; KM=224; VM=240; FV=148
VMP=84
SX0=92; SX1=96; SM=100; PB=104; PM=108; OA=112
OF=0
WA=32
PK=48
GA=32
CI=0
XR=28
R2=64
L16=128; L8=129; OWA=130; GAD=131; SLA=132; XA=133; SEL=136; RA=140; T0=144; T1=145; NEG=146; ZR=147
S_W=3; S_H=4; S_IT=5; S_SEG=6; S_TEAM=7
SRD_WS=8; SRD_W=12; SRD_DBG=16; SRD_X=24; SRD_O=28
S_T=20
S_MASK=32
S_C=48; S_E=49; S_PB=50; S_RETRY=51; S_B8=52; S_B4=53; S_TQ=54; S_EH=55; S_GB=56; S_OEP=57; S_NB=58; S_PV=59; S_NS=66; S_A1=67; S_A2=68; S_A3=69; S_OK=70; S_PG=73; S_PE=74; S_PB4=75; S_PSEG=76
MAXRETRY=100000000
NTEAMS=2
def srd(A, d, lo, size):
    A(f's_mov_b32 s{d}, s{lo}\ns_and_b32 s{d+1}, s{lo+1}, 0xffff\ns_mov_b32 s{d+2}, {size}\ns_mov_b32 s{d+3}, 0x20000')

def s2_setup(A, st):
    WSR=f's[{SRD_WS}:{SRD_WS+3}]'
    A(f'''
    s_load_dwordx2 s[60:61], s[0:1], {KA_WO}
    s_load_dwordx2 s[62:63], s[0:1], {KA_X}
    s_load_dwordx2 s[64:65], s[0:1], {KA_OUT}
    v_and_b32 v1, 63, v0
    v_and_b32 v2, 15, v1
    v_lshrrev_b32 v3, 4, v1
    v_lshlrev_b32 v{L16}, 4, v1
    v_lshlrev_b32 v{L8}, 3, v1
    s_and_b32 s{S_TQ}, s{S_W}, 1
    s_lshr_b32 s{S_EH}, s{S_W}, 1
    s_mov_b32 s{S_C}, 0x3e0293ee
    s_mov_b32 s{S_RETRY}, 0
    v_mov_b32 v{NEG}, 0xff800000
    v_mov_b32 v{ZR}, 0
    s_lshl_b32 s{S_T}, s{S_TQ}, 4
    v_add_u32 v4, s{S_T}, v2
    v_lshlrev_b32 v5, 2, v3
    ''')
    for tk in range(2):
        for r in range(4):
            A(f'v_add_u32 v6, {16*tk+r}, v5')
            A(f'v_cmp_gt_u32 s[{S_MASK+2*(tk*4+r)}:{S_MASK+2*(tk*4+r)+1}], v6, v4')
    A(f'''
    s_lshl_b32 s{S_T}, s{S_TQ}, 2
    s_lshl_b32 s{S_T+1}, s{S_EH}, 1
    s_add_u32 s{S_T}, s{S_T}, s{S_T+1}
    s_lshl_b32 s{S_T}, s{S_T}, 10
    s_add_u32 s{S_T}, s{S_T}, {L_OE}
    v_add_u32 v{OWA}, s{S_T}, v{L16}
    v_lshlrev_b32 v4, 10, v3
    v_lshl_add_u32 v4, v2, 4, v4
    s_lshl_b32 s{S_T}, s{S_W}, 8
    v_add_u32 v{GAD}, s{S_T}, v4
    v_bfe_u32 v4, v2, 2, 1               ; tt
    v_and_b32 v5, 3, v2
    s_lshl_b32 s{S_T}, s{S_W}, 2
    v_add_u32 v5, s{S_T}, v5             ; t15
    v_lshl_add_u32 v6, v3, 4, v5
    v_lshlrev_b32 v6, 4, v6
    v_lshl_add_u32 v{SLA}, v4, 10, v6
    v_lshl_add_u32 v6, v4, 4, v5
    v_lshlrev_b32 v6, 10, v6
    v_lshl_add_u32 v6, v3, 3, v6
    s_lshl_b32 s{S_T}, s{S_H}, 5
    v_add_u32 v{XA}, s{S_T}, v6
    v_and_b32 v4, 1, v2
    v_lshlrev_b32 v4, 4, v4
    v_mov_b32 v5, 0x3f80
    v_lshlrev_b32 v4, v4, v5
    v_bfe_u32 v5, v2, 1, 2
    ''')
    for j in range(4):
        A(f'v_cmp_eq_u32 vcc, {j}, v5')
        A(f'v_cndmask_b32 v{SEL+j}, 0, v4, vcc')
    A('s_waitcnt lgkmcnt(0)')
    srd(A,SRD_W,60,4*MiB); srd(A,SRD_X,62,2*MiB); srd(A,SRD_O,64,2*MiB)
    A(f'''
    s_lshl_b32 s{S_PB}, s{S_TEAM}, 21
    s_add_u32 s{S_PB}, s{S_PB}, {P2_OFF}
    v_mov_b32 v4, -1
    v_mov_b32 v5, -1
    v_mov_b32 v6, -1
    v_mov_b32 v7, -1
    v_lshlrev_b32 v8, 4, v0
    s_lshl_b32 s{S_T}, s{S_H}, 15
    s_add_u32 s{S_T}, s{S_T}, s{S_PB}
    ''')
    for slot in range(2):
        for i in range(8):
            A(f's_add_u32 s{S_T+1}, s{S_T}, {slot*MiB+i*4096}')
            A(f'buffer_store_dwordx4 v[4:7], v8, {WSR}, s{S_T+1} offen{st}')
    A(f'''
    v_lshlrev_b32 v9, 1, v3
    v_xor_b32 v9, v9, v2
    v_lshlrev_b32 v9, 4, v9
    v_lshl_add_u32 v9, v3, 10, v9
    s_lshl_b32 s{S_T}, s{S_W}, 8
    v_add_u32 v9, s{S_T}, v9
    v_xor_b32 v10, 128, v9
    s_lshl_b32 s{S_T+2}, s{S_W}, 15
    s_lshl_b32 s{S_T+3}, s{S_H}, 17
    ''')
    for n in range(32):
        A(f's_add_u32 m0, s{S_T+2}, {n*1024}')
        A(f's_add_u32 s{S_T}, s{S_T+3}, {n*4096}')
        A(f'buffer_load_dwordx4 v{9+(n&1)}, s[{SRD_W}:{SRD_W+3}], s{S_T} offen lds')
    A(f'''
    v_bfe_u32 v11, v1, 2, 2
    v_lshl_add_u32 v12, v3, 2, v11
    v_lshlrev_b32 v12, 8, v12
    v_and_b32 v13, 3, v1
    v_lshl_add_u32 v12, v13, 3, v12
    v_and_b32 v13, 1, v3
    v_lshl_add_u32 v11, v13, 2, v11
    v_lshl_add_u32 v12, v11, 5, v12
    v_add_u32 v12, s{S_T+2}, v12
    s_waitcnt vmcnt(0)
    ''')
    for c in range(8):
        A(f'v_xor_b32 v13, {c*32}, v12')
        for ks in range(4):
            for u in range(2):
                b=(c*4+ks)*4+2*u
                A(f'ds_read_b64_tr_b16 a[{b}:{b+1}], v13 offset:{ks*8192+u*4096}')
    A('s_waitcnt lgkmcnt(0)')
    A.reset_queues()

def poison(A, seg0, seg1):
    WSR=f's[{SRD_WS}:{SRD_WS+3}]'
    Lz=A.newlabel('L2z'); Ls=A.newlabel('L2zs')
    A(f'''
    s_add_u32 s{S_SEG}, s{S_TEAM}, {seg0}
    v_mov_b32 v4, -1
    v_mov_b32 v5, -1
    v_mov_b32 v6, -1
    v_mov_b32 v7, -1
    v_lshlrev_b32 v8, 4, v0
    v_and_b32 v9, 0x7f0, v8
    ''')
    A.label(Lz)
    A(f'''
    s_lshl_b32 s{S_T}, s{S_SEG}, 5
    s_add_u32 s{S_T}, s{S_T}, s{S_H}
    s_lshl_b32 s{S_T+1}, s{S_T}, 12
    s_add_u32 s{S_T+1}, s{S_T+1}, {KM_OFF}
    s_lshl_b32 s{S_T}, s{S_T}, 11
    s_add_u32 s{S_T}, s{S_T}, {VM_OFF}
    buffer_store_dwordx4 v[4:7], v8, {WSR}, s{S_T+1} offen sc1
    s_cmp_ge_u32 s{S_W}, 2
    s_cbranch_scc1 {Ls}
    buffer_store_dwordx4 v[4:7], v9, {WSR}, s{S_T} offen sc1
    ''')
    A.label(Ls)
    A(f's_add_u32 s{S_SEG}, s{S_SEG}, {NTEAMS}\ns_cmp_lt_u32 s{S_SEG}, {seg1}')
    A.branch(f's_cbranch_scc1 {Lz}')
    A.reset_queues()
    Le=A.newlabel('L2ze')
    A(f'''
    s_waitcnt vmcnt(0)
    s_barrier
    s_cmp_lg_u32 s{S_W}, 0
    s_cbranch_scc1 {Le}
    v_lshlrev_b32 v9, 7, v0
    v_mov_b32 v4, 1
    s_lshl_b32 s{S_T}, s{S_H}, 2
    s_add_u32 s{S_T}, s{S_T}, {F1_OFF+(seg0//4)*128}
    s_mov_b64 exec, {(1<<((seg1-seg0)//4))-1}
    buffer_atomic_add v4, v9, {WSR}, s{S_T} offen
    s_mov_b64 exec, -1
    ''')
    A.label(Le)
    A.reset_queues()

def poll(A, saddr, cmp, val, sleep=2):
    WSR=f's[{SRD_WS}:{SRD_WS+3}]'
    L=A.newlabel('Lpl'); L2=A.newlabel('Lpd')
    A.label(L)
    A.reset_queues()
    A(f'buffer_load_dword v{T0}, off, {WSR}, s{saddr} sc1')
    A('s_waitcnt vmcnt(0)')
    A(f'v_readfirstlane_b32 s{S_PV}, v{T0}')
    A(f's_cmp_{cmp}_u32 s{S_PV}, {val}')
    A.branch(f's_cbranch_scc1 {L2}', fence=False)
    A(f's_add_u32 s{S_RETRY}, s{S_RETRY}, 1\ns_cmp_gt_u32 s{S_RETRY}, {MAXRETRY}')
    A.branch(f's_cbranch_scc1 {L2}', fence=False)
    A(f's_sleep {sleep}')
    A.branch(f's_branch {L}', fence=False)
    A.label(L2)

def flag_addrs(A, sseg):
    A(f'''
    s_lshr_b32 s{S_T}, s{sseg}, 2
    s_lshl_b32 s{S_A2}, s{S_T}, 7
    s_add_u32 s{S_A2}, s{S_A2}, {F2_OFF}
    s_lshl_b32 s{S_T}, s{S_T}, 5
    s_add_u32 s{S_T}, s{S_T}, s{S_H}
    s_lshl_b32 s{S_T}, s{S_T}, 2
    s_add_u32 s{S_A1}, s{S_T}, {F1_OFF}
    ''')
def xloads(A, sseg, ldm):
    WSR=f's[{SRD_WS}:{SRD_WS+3}]'
    A(f'''
    s_lshl_b32 s{S_T}, s{sseg}, 5
    s_add_u32 s{S_T}, s{S_T}, s{S_H}
    s_lshl_b32 s{S_NB}, s{S_T}, 13
    s_lshl_b32 s{S_T+1}, s{S_TQ}, 10
    s_add_u32 s{S_T+1}, s{S_T+1}, s{S_NB}
    s_add_u32 s{S_T+1}, s{S_T+1}, {QX_OFF}
    s_add_u32 s{S_T+3}, s{S_T+1}, 4096
    ''')
    for ks in range(4):
        A(f'buffer_load_dwordx4 v[{QF+4*ks}:{QF+4*ks+3}], v{L16}, {WSR}, s{S_T+1+2*(ks//2)} offen offset:{(ks%2)*2048}{ldm}')
    A(f's_add_u32 s{S_T+1}, s{S_NB}, {KX_OFF}\ns_add_u32 s{S_T+3}, s{S_T+1}, 4096')
    for ks in range(4):
        A(f'buffer_load_dwordx4 v[{KX0+4*ks}:{KX0+4*ks+3}], v{L16}, {WSR}, s{S_T+1+2*(ks//2)} offen offset:{(ks%2)*2048}{ldm}')
        A(f'buffer_load_dwordx4 v[{KX1+4*ks}:{KX1+4*ks+3}], v{L16}, {WSR}, s{S_T+1+2*(ks//2)} offen offset:{(ks%2)*2048+1024}{ldm}')
    A(f's_lshl_b32 s{S_T+1}, s{S_EH}, 12\ns_add_u32 s{S_T+1}, s{S_T+1}, s{S_NB}\ns_add_u32 s{S_T+1}, s{S_T+1}, {VX_OFF}')
    for i in range(4): A(f'buffer_load_dwordx4 v[{VX+4*i}:{VX+4*i+3}], v{L16}, {WSR}, s{S_T+1} offen offset:{i*1024}{ldm}')
def mloads(A, ldm):
    WSR=f's[{SRD_WS}:{SRD_WS+3}]'
    A(f's_lshr_b32 s{S_T+3}, s{S_NB}, 1\ns_add_u32 s{S_T+3}, s{S_T+3}, {KM_OFF}')
    for ks in range(4):
        A(f'buffer_load_dwordx4 v[{KM+4*ks}:{KM+4*ks+3}], v{L16}, {WSR}, s{S_T+3} offen offset:{ks*1024}{ldm}')
    A(f'''
    s_lshr_b32 s{S_T+1}, s{S_NB}, 2
    s_lshl_b32 s{S_T+3}, s{S_EH}, 10
    s_add_u32 s{S_T+1}, s{S_T+1}, s{S_T+3}
    s_add_u32 s{S_T+1}, s{S_T+1}, {VM_OFF}
    ''')
    A(f'buffer_load_dwordx2 v[{VM}:{VM+1}], v{L8}, {WSR}, s{S_T+1} offen{ldm}')
    A(f'buffer_load_dwordx2 v[{VM+2}:{VM+3}], v{L8}, {WSR}, s{S_T+1} offen offset:512{ldm}')

def s2_loop(A, st, ldm, nteams, flags=True):
    WSR=f's[{SRD_WS}:{SRD_WS+3}]'
    Ltop=A.newlabel('L2top'); Lend=A.newlabel('L2end'); Lslow=A.newlabel('L2slow')
    Lmr=A.newlabel('L2mr'); Lmc=A.newlabel('L2mc'); Lmo=A.newlabel('L2mo')
    tails=[]
    gld=[]
    for jj in range(8):
        gld.append(f's_add_u32 s72, s{S_PG}, {jj*4096}')
        gld.append(f'buffer_load_dwordx4 v[{GA+4*jj}:{GA+4*jj+3}], v{GAD}, {WSR}, s72 offen sc1')
    def gissue():
        A(f's_lshr_b32 s{S_T+1}, s{S_PB4}, 1\ns_add_u32 s{S_T+1}, s{S_T+1}, {FF_OFF}\ns_lshl_b32 s71, s{S_PSEG}, 15')
        for i in range(7):
            if i: A(f's_add_u32 s{S_T+1}, s{S_T+1}, {4*MiB}')
            A(f'buffer_load_dwordx4 v[{CI+4*i}:{CI+4*i+3}], v{SLA}, {WSR}, s{S_T+1} offen{ldm}')
        A(f'buffer_load_dwordx2 v[{XR}:{XR+1}], v{XA}, s[{SRD_X}:{SRD_X+3}], s71 offen')
        for x in gld: A(x)
    def gproc():
        Lg0=A.newlabel('L2g0'); Lgr=A.newlabel('L2gr'); Lgo=A.newlabel('L2go')
        A(f'v_lshlrev_b32 v{RA}, 16, v{XR}\nv_and_b32 v{RA+1}, 0xffff0000, v{XR}\nv_lshlrev_b32 v{RA+2}, 16, v{XR+1}\nv_and_b32 v{RA+3}, 0xffff0000, v{XR+1}')
        for i in range(7):
            for r in range(4): A(f'v_add_f32 v{RA+r}, v{RA+r}, v{CI+4*i+r}')
        A.label(Lg0, fence=False)
        A(f'v_mov_b32 v{T0}, 0')
        for jj in range(8):
            m=GA+4*jj
            c=f'v[{RA}:{RA+3}]' if jj==0 else f'v[{R2}:{R2+3}]'
            A(f'v_mfma_f32_16x16x32_bf16 v[{R2}:{R2+3}], v[{m}:{m+3}], v[{SEL}:{SEL+3}], {c}')
            A(f'v_bitop3_b32 v{T0}, v{T0}, v{m}, s{S_PE} bitop3:0xf6')
            A(f'v_bitop3_b32 v{T0}, v{T0}, v{m+2}, s{S_PE} bitop3:0xf6')
        A(f'v_and_b32 v{T0}, 1, v{T0}\nv_cmp_ne_u32 vcc, 0, v{T0}')
        A.branch(f's_cbranch_vccnz {Lgr}', fence=False)
        A.label(Lgo, fence=False)
        A(f'v_cvt_pk_bf16_f32 v{R2+4}, v{R2}, v{R2+1}\nv_cvt_pk_bf16_f32 v{R2+5}, v{R2+2}, v{R2+3}')
        A(f'buffer_store_dwordx2 v[{R2+4}:{R2+5}], v{XA}, s[{SRD_O}:{SRD_O+3}], s71 offen')
        tails.append((Lgr,Lg0,Lgo))
    A(f's_mov_b32 s{S_IT}, 0\ns_mov_b32 s{S_SEG}, s{S_TEAM}')
    A.label(Lslow)
    A.reset_queues()
    flag_addrs(A,S_SEG)
    poll(A,S_A1,'ge',1+NTEAMS); poll(A,S_A2,'ge',7)
    xloads(A,S_SEG,ldm); mloads(A,ldm)
    A.label(Ltop)
    A.reset_queues()
    A(f'''
    s_lshr_b32 s{S_B4}, s{S_NB}, 1
    s_lshr_b32 s{S_E}, s{S_IT}, 1
    s_and_b32 s{S_E}, s{S_E}, 1
    s_and_b32 s{S_T}, s{S_IT}, 1
    s_lshl_b32 s{S_OEP}, s{S_T}, 13
    s_lshl_b32 s{S_T}, s{S_T}, 20
    s_add_u32 s{S_GB}, s{S_T}, s{S_PB}
    s_add_u32 s{S_NS}, s{S_SEG}, {nteams}
    s_min_u32 s{S_OK}, s{S_NS}, 63
    ''')
    flag_addrs(A,S_OK)
    A.label(Lmc)
    A('s_waitcnt vmcnt(0)')
    A(f'v_max3_u32 v{T0}, v{KM}, v{KM+1}, v{KM+2}')
    for i in range(3,19,2): A(f'v_max3_u32 v{T0}, v{T0}, v{KM+i}, v{KM+i+1}')
    A(f'v_max_u32 v{T0}, v{T0}, v{KM+19}')
    A(f'v_cmp_eq_u32 vcc, -1, v{T0}')
    A.branch(f's_cbranch_vccnz {Lmr}', fence=False)
    A.label(Lmo, fence=False)
    assert VM==KM+16
    for n_,sa in enumerate((S_A1,S_A2)): A(f'buffer_load_dword v{FV+n_}, off, {WSR}, s{sa} sc1')
    Lng=A.newlabel('L2ng')
    A(f's_cmp_eq_u32 s{S_IT}, 0')
    A.branch(f's_cbranch_scc1 {Lng}', fence=False)
    gissue()
    A.label(Lng, fence=False)
    for ks in range(4):
        for (acc,src) in ((SX0,KX0),(SX1,KX1),(SM,KM)):
            c='0' if ks==0 else f'v[{acc}:{acc+3}]'
            A(f'v_mfma_f32_16x16x32_bf16 v[{acc}:{acc+3}], v[{src+4*ks}:{src+4*ks+3}], v[{QF+4*ks}:{QF+4*ks+3}], {c}')
    for i in range(8): A(f'v_cndmask_b32 v{SX0+i}, v{SX0+i}, v{NEG}, s[{S_MASK+2*i}:{S_MASK+2*i+1}]')
    A(f'''
    v_max3_f32 v{T0}, v{SX0}, v{SX0+1}, v{SX0+2}
    v_max3_f32 v{T1}, v{SX0+3}, v{SX1}, v{SX1+1}
    v_max3_f32 v{T0}, v{T0}, v{SX1+2}, v{SX1+3}
    v_max3_f32 v{T1}, v{T1}, v{SM}, v{SM+1}
    v_max_f32 v{T0}, v{T0}, v{T1}
    v_mov_b32 v{T1}, v{T0}
    v_permlane32_swap_b32 v{T0}, v{T1}
    v_max_f32 v{T0}, v{T0}, v{T1}
    v_mov_b32 v{T1}, v{T0}
    v_permlane16_swap_b32 v{T0}, v{T1}
    v_max_f32 v{T0}, v{T0}, v{T1}
    v_mul_f32 v{T0}, s{S_C}, v{T0}
    ''')
    for i in range(10): A(f'v_fma_f32 v{SX0+i}, v{SX0+i}, s{S_C}, -v{T0}')
    for i in range(10): A(f'v_exp_f32 v{SX0+i}, v{SX0+i}')
    for i in range(5): A(f'v_cvt_pk_bf16_f32 v{PB+i}, v{SX0+2*i}, v{SX0+2*i+1}')
    A(f'v_mov_b32 v{PM+1}, 0')
    for i in range(4): A(f'v_mov_b32 v{VMP+2*i}, v{VM+i}\nv_mov_b32 v{VMP+2*i+1}, 0')
    for i in range(4): A(f'v_mfma_f32_16x16x32_bf16 v[{OA+4*i}:{OA+4*i+3}], v[{VX+4*i}:{VX+4*i+3}], v[{PB}:{PB+3}], 0')
    for i in range(4): A(f'v_mfma_f32_16x16x16_bf16 v[{OA+4*i}:{OA+4*i+3}], v[{VMP+2*i}:{VMP+2*i+1}], v[{PM}:{PM+1}], v[{OA+4*i}:{OA+4*i+3}]')
    A(f'v_add_f32 v{T0}, v{SX0}, v{SX0+1}')
    for i in range(2,10): A(f'v_add_f32 v{T0}, v{T0}, v{SX0+i}')
    A(f'''
    v_mov_b32 v{T1}, v{T0}
    v_permlane32_swap_b32 v{T0}, v{T1}
    v_add_f32 v{T0}, v{T0}, v{T1}
    v_mov_b32 v{T1}, v{T0}
    v_permlane16_swap_b32 v{T0}, v{T1}
    v_add_f32 v{T0}, v{T0}, v{T1}
    v_rcp_f32 v{T0}, v{T0}
    v_add_u32 v{T1}, s{S_OEP}, v{OWA}
    ''')
    for i in range(16): A(f'v_mul_f32 v{OA+i}, v{OA+i}, v{T0}')
    for i in range(8): A(f'v_cvt_pk_bf16_f32 v{SX0+i}, v{OA+2*i}, v{OA+2*i+1}')
    A(f'ds_write_b128 v{T1}, v[{SX0}:{SX0+3}]')
    A(f'ds_write_b128 v{T1}, v[{SX0+4}:{SX0+7}] offset:1024')
    A(f's_add_u32 s{S_T}, s{S_OEP}, {L_OE}\nv_add_u32 v{T1}, s{S_T}, v{L16}')
    Lng2=A.newlabel('L2ng2')
    A(f's_cmp_eq_u32 s{S_IT}, 0')
    A.branch(f's_cbranch_scc1 {Lng2}', fence=False)
    gproc()
    A.label(Lng2)
    A.reset_queues()
    A('s_waitcnt vmcnt(1) lgkmcnt(0)')
    A(f's_cmp_lg_u32 s{S_IT}, 0')
    Lw=A.newlabel('L2w')
    A.branch(f's_cbranch_scc1 {Lw}', fence=False)
    A('s_waitcnt vmcnt(0)')
    A.label(Lw, fence=False)
    A('s_barrier')
    for i in range(8): A(f'ds_read_b128 v[{OF+4*i}:{OF+4*i+3}], v{T1} offset:{i*1024}')
    A(f'''
    v_readfirstlane_b32 s{S_A1}, v{FV}
    v_readfirstlane_b32 s{S_A2}, v{FV+1}
    s_lshl_b32 s{S_PG}, s{S_H}, 15
    s_add_u32 s{S_PG}, s{S_PG}, s{S_GB}
    s_mov_b32 s{S_PE}, s{S_E}
    s_mov_b32 s{S_PB4}, s{S_B4}
    s_mov_b32 s{S_PSEG}, s{S_SEG}
    s_cmp_ge_u32 s{S_A1}, {1+NTEAMS}
    s_cselect_b32 s{S_OK}, 1, 0
    s_cmp_ge_u32 s{S_A2}, 7
    s_cselect_b32 s{S_OK}, s{S_OK}, 0
    s_cmp_lt_u32 s{S_NS}, 64
    s_cselect_b32 s{S_OK}, s{S_OK}, 0
    s_cmp_eq_u32 s{S_OK}, 0
    ''')
    Lnl=A.newlabel('L2nl')
    A.branch(f's_cbranch_scc1 {Lnl}', fence=False)
    xloads(A,S_NS,ldm)
    A.label(Lnl, fence=False)
    A.vq=[]
    A(f's_lshl_b32 s{S_T}, s{S_W}, 18\ns_add_u32 s{S_T}, s{S_T}, s{S_GB}\ns_lshl_b32 s{S_T+1}, s{S_H}, 10\ns_add_u32 s{S_T}, s{S_T}, s{S_T+1}')
    def epi(c):
        acc=WA+8*(c%2); o=PK+4*(c%2)
        L=[f'v_cvt_pk_bf16_f32 v{o+i}, v{acc+2*i}, v{acc+2*i+1}' for i in range(4)]
        L+=[f'v_and_or_b32 v{o}, v{o}, -2, s{S_E}', f'v_and_or_b32 v{o+2}, v{o+2}, -2, s{S_E}',
            f'buffer_store_dwordx4 v[{o}:{o+3}], v{L16}, {WSR}, s{S_T} offen{st}', f's_add_u32 s{S_T}, s{S_T}, 32768']
        return L
    pend=[]
    for c in range(8):
        n=0
        for ks in range(4):
            for tq in range(2):
                acc=WA+8*(c%2)+4*tq; b=(c*4+ks)*4; o=OF+(tq*4+ks)*4
                cc='0' if ks==0 else f'v[{acc}:{acc+3}]'
                A(f'v_mfma_f32_16x16x32_bf16 v[{acc}:{acc+3}], v[{o}:{o+3}], a[{b}:{b+3}], {cc}')
                n+=1
                if n>=3:
                    for _ in range(2):
                        if pend: A(pend.pop(0))
        pend=epi(c)
    for x in pend: A(x)
    A(f's_add_u32 s{S_IT}, s{S_IT}, 1\ns_mov_b32 s{S_SEG}, s{S_NS}\ns_cmp_lt_u32 s{S_SEG}, 64')
    Lfin=A.newlabel('L2fin')
    A.branch(f's_cbranch_scc0 {Lfin}')
    A(f's_cmp_eq_u32 s{S_OK}, 0')
    A.branch(f's_cbranch_scc1 {Lslow}')
    mloads(A,ldm)
    A.branch(f's_branch {Ltop}')
    A.label(Lfin)
    A.reset_queues()
    gissue()
    gproc()
    A.branch(f's_branch {Lend}')
    for (Lgr,Lg0,Lgo) in tails:
        A.label(Lgr)
        A.reset_queues()
        A(f's_add_u32 s{S_RETRY}, s{S_RETRY}, 1\ns_cmp_gt_u32 s{S_RETRY}, {MAXRETRY}')
        A.branch(f's_cbranch_scc1 {Lgo}', fence=False)
        A.auto=False
        for x in gld: A(x)
        A('s_waitcnt vmcnt(0)')
        A.auto=True
        A.branch(f's_branch {Lg0}')
    A.label(Lmr)
    A.reset_queues()
    A(f's_add_u32 s{S_RETRY}, s{S_RETRY}, 1\ns_cmp_gt_u32 s{S_RETRY}, {MAXRETRY}')
    A.branch(f's_cbranch_scc1 {Lmo}', fence=False)
    A('s_sleep 2')
    A.auto=False
    mloads(A,ldm)
    A.auto=True
    A.branch(f's_branch {Lmc}')
    A.label(Lend)
    A.reset_queues()
```

```python
import sys; sys.path.insert(0,'gen')
from asmlib import *
from layout import *
from common import *
import ln, worker as W, chain8 as C, stage2b as S2
NT=2
LDS=C.CHAIN_LDS
LM=C.L_MISC
NTASK=16*39
def rc(i): return RC_OFF+128*i
def ln_kernel(A):
    kstart(A,'ln_kernel')
    A(f'''
    s_cmp_ge_u32 s2, 256
    s_cbranch_scc1 Lln_exit
    s_load_dwordx2 s[4:5], s[0:1], {KA_X}
    s_load_dwordx2 s[6:7], s[0:1], {KA_WS}
    s_waitcnt lgkmcnt(0)
    ''')
    ln.srd(A,8,4,2*MiB); ln.srd(A,12,6,WS_SIZE)
    A(f'''
    s_lshl_b32 s20, s2, 8
    s_add_u32 s20, s20, {FL_OFF}
    v_and_b32 v1, 63, v0
    v_lshlrev_b32 v1, 2, v1
    v_mov_b32 v2, 0
    buffer_store_dword v2, v1, s[12:15], s20 offen
    ''')
    ln.ln_rows(A,2,8,12)
    A.label('Lln_exit')
    A('s_endpgm')
SWS=8
def bcast_atomic(A, op, val, saddr, dst):
    lab=A.newlabel('Lba')
    A(f'''
    s_waitcnt lgkmcnt(0)
    s_barrier
    v_mov_b32 v250, {val}
    v_mov_b32 v251, {LM}
    v_cmp_eq_u32 vcc, 0, v253
    s_and_saveexec_b64 s[98:99], vcc
    s_cbranch_execz {lab}
    buffer_atomic_{op} v250, off, s[{SWS}:{SWS+3}], s{saddr} sc0
    s_waitcnt vmcnt(0)
    ds_write_b32 v251, v250
    s_waitcnt lgkmcnt(0)
    ''')
    A.label(lab)
    A.reset_queues()
    A(f'''
    s_mov_b64 exec, s[98:99]
    s_barrier
    ds_read_b32 v250, v251
    s_waitcnt lgkmcnt(0)
    v_readfirstlane_b32 s{dst}, v250
    s_nop 3
    ''')
def team_sync(A, srole, sxcc, dstmask, extra=()):
    p=A.newlabel('Lts')
    A(f'''
    s_waitcnt vmcnt(0) lgkmcnt(0)
    s_barrier
    s_mul_i32 s96, s{srole}, 384
    s_add_u32 s96, s96, {rc(1)}
    s_add_u32 s97, s96, 128
    v_mov_b32 v3, {LM}
    s_cmp_lg_u32 s3, 0
    s_cbranch_scc1 {p}_2
    s_lshl_b32 s95, 1, s{sxcc}
    v_mov_b32 v1, s95
    s_mov_b64 exec, 1
    buffer_atomic_or v1, off, s[{SWS}:{SWS+3}], s97 sc0
    s_waitcnt vmcnt(0)
    v_mov_b32 v1, 1
    buffer_atomic_add v1, off, s[{SWS}:{SWS+3}], s96
    s_mov_b32 s94, 0
    ''')
    A.label(p+'_1')
    A(f'buffer_load_dword v1, off, s[{SWS}:{SWS+3}], s96 sc1')
    for n,o in enumerate(extra): A(f'buffer_load_dword v{4+n}, off, s[{SWS}:{SWS+3}], s96 offset:{o} sc1')
    A('s_waitcnt vmcnt(0)')
    for n,o in enumerate(extra): A(f'v_min_u32 v1, v1, v{4+n}')
    A(f'''
    v_readfirstlane_b32 s95, v1
    s_add_u32 s94, s94, 1
    s_cmp_gt_u32 s94, 30000000
    s_cbranch_scc1 {p}_3
    s_cmp_lt_u32 s95, 32
    s_cbranch_scc1 {p}_1
    ''')
    A.label(p+'_3')
    A(f'''
    buffer_load_dword v1, off, s[{SWS}:{SWS+3}], s97 sc1
    s_waitcnt vmcnt(0)
    ds_write_b32 v3, v1
    s_waitcnt lgkmcnt(0)
    s_mov_b64 exec, -1
    ''')
    A.label(p+'_2')
    A.reset_queues()
    A(f'''
    s_barrier
    ds_read_b32 v1, v3
    s_waitcnt lgkmcnt(0)
    v_readfirstlane_b32 s{dstmask}, v1
    s_nop 3
    ''')
def tstamp(A, idx, extra=None):
    A(f'''
    s_memrealtime s[94:95]
    s_lshl_b32 s96, s2, 6
    s_add_u32 s96, s96, {TS_OFF+idx*8}
    s_waitcnt lgkmcnt(0)
    v_mov_b32 v0, s94
    v_mov_b32 v1, {('s%d'%extra) if extra is not None else 0}
    buffer_store_dwordx2 v[0:1], off, s[{SWS}:{SWS+3}], s96
    ''')
def mega_kernel(A, force_slow=False, quota=32, dA=48, dB=48, ts=False, maxx=8):
    kstart(A,'mega_kernel')
    A(f'''
    s_cmp_ge_u32 s2, 256
    s_cbranch_scc1 Lm_exit
    s_getreg_b32 s101, hwreg(HW_REG_XCC_ID)
    s_and_b32 s101, s101, 15
    s_load_dwordx2 s[6:7], s[0:1], {KA_WS}
    s_memrealtime s[92:93]
    v_lshrrev_b32 v1, 6, v0
    v_mov_b32 v253, v0
    v_readfirstlane_b32 s3, v1
    s_waitcnt lgkmcnt(0)
    s_mov_b32 s100, s92
    ''')
    W.srd(A,SWS,6,WS_SIZE)
    A(f's_mov_b32 s93, s101\ns_cmp_gt_u32 s101, {NT}')
    A.branch('s_cbranch_scc1 Lm_worker')
    if quota<32:
        A(f's_cmp_ge_u32 s2, {quota*8}')
        A.branch('s_cbranch_scc1 Lm_worker')
    A.label('Lm_try')
    A.reset_queues()
    A(f's_mul_i32 s96, s93, 384\ns_add_u32 s96, s96, {rc(0)}')
    bcast_atomic(A,'add',1,96,4)
    A('s_cmp_ge_u32 s4, 32')
    A.branch('s_cbranch_scc1 Lm_worker')
    A('v_mov_b32 v0, v253\ns_cmp_lg_u32 s93, 0')
    A.branch('s_cbranch_scc1 Lm_s2')
    C.chain_setup(A)
    C.chain_init_rings(A,' sc1')
    C.chain_load_weights(A)
    A('s_mov_b32 s93, 0')
    team_sync(A,93,101,93)
    A('s_bcnt1_i32_b32 s93, s93\ns_cmp_lg_u32 s93, 1')
    A.branch('s_branch Lm_chs' if force_slow else 's_cbranch_scc1 Lm_chs')
    if ts:
        tstamp(A,1,100); A('s_memtime s[98:99]\ns_waitcnt lgkmcnt(0)')
    C.chain_loop(A,'',' sc1',dbg=False,delayA=dA,delayB=dB,flags=True)
    if ts:
        A('s_memtime s[96:97]\ns_waitcnt lgkmcnt(0)\ns_sub_u32 s98, s96, s98')
        tstamp(A,3,98)
        A('s_mov_b32 s97, 100'); tstamp(A,2,C.S_RETRY); tstamp(A,0,97)
    A.branch('s_branch Lm_exit')
    A.label('Lm_chs')
    A.reset_queues()
    C.chain_loop(A,' sc1',' sc1',dbg=False,delayA=dA,delayB=dB,flags=True)
    A.branch('s_branch Lm_exit')
    A.label('Lm_s2')
    A.reset_queues()
    A(f's_sub_u32 s{S2.S_TEAM}, s93, 1')
    S2.poison(A,0,8)
    S2.s2_setup(A,' sc1')
    S2.poison(A,8,64)
    team_sync(A,93,101,93)
    A('s_bcnt1_i32_b32 s93, s93\ns_cmp_lg_u32 s93, 1')
    A.branch('s_branch Lm_s2s' if force_slow else 's_cbranch_scc1 Lm_s2s')
    if ts: tstamp(A,1,100)
    S2.s2_loop(A,'',' sc1',NT,flags=True)
    if ts: A('s_mov_b32 s97, 200'); tstamp(A,2,S2.S_RETRY); tstamp(A,0,97)
    A.branch('s_branch Lm_exit')
    A.label('Lm_s2s')
    A.reset_queues()
    S2.s2_loop(A,' sc1',' sc1',NT,flags=True)
    A.branch('s_branch Lm_exit')
    A.label('Lm_worker')
    A.reset_queues()
    if maxx<8:
        A(f's_cmp_ge_u32 s101, {maxx}')
        A.branch('s_cbranch_scc1 Lm_exit')
    W.lane_consts(A,253)
    A('s_mov_b32 s91, 0\ns_mov_b32 s84, 0')
    A.label('Lm_wloop')
    A.reset_queues()
    A(f'''
    s_waitcnt lgkmcnt(0)
    s_barrier
    v_mov_b32 v251, {LM}
    s_cmp_lg_u32 s3, 0
    s_cbranch_scc1 Lm_w2
    s_mov_b32 s95, {rc(0)}
    s_mov_b32 s96, {rc(3)}
    s_mov_b32 s97, {rc(6)}
    s_mov_b32 s90, 0
    ''')
    A.label('Lm_w0')
    A(f'''
    s_memrealtime s[92:93]
    s_waitcnt lgkmcnt(0)
    s_sub_u32 s92, s92, s100
    s_mov_b32 s94, 255
    s_cmp_lt_u32 s92, 3000
    s_cselect_b32 s89, 1, 0              ; early
    s_cmp_eq_u32 s89, 1
    s_cselect_b32 s88, s91, 1
    s_andn2_b32 s88, s88, s84
    s_cmp_eq_u32 s88, 0
    s_cbranch_scc1 Lm_w1
    buffer_load_dword v244, off, s[{SWS}:{SWS+3}], s95 sc1
    buffer_load_dword v245, off, s[{SWS}:{SWS+3}], s96 sc1
    buffer_load_dword v246, off, s[{SWS}:{SWS+3}], s97 sc1
    s_waitcnt vmcnt(0)
    v_readfirstlane_b32 s85, v244
    v_readfirstlane_b32 s86, v245
    v_readfirstlane_b32 s87, v246
    s_nop 3
    s_cmp_lt_u32 s87, 32
    s_cselect_b32 s94, 2, s94
    s_cmp_lt_u32 s86, 32
    s_cselect_b32 s94, 1, s94
    s_cmp_lt_u32 s85, 32
    s_cselect_b32 s94, 0, s94
    s_cmp_eq_u32 s94, 255
    s_cselect_b32 s84, 1, 0
    s_cbranch_scc1 Lm_w1
    s_cmp_eq_u32 s89, 0
    s_cbranch_scc1 Lm_w1
    s_sleep 16
    s_branch Lm_w0
    ''')
    A.label('Lm_w1')
    A(f'''
    v_mov_b32 v250, s94
    ds_write_b32 v251, v250
    s_waitcnt lgkmcnt(0)
    ''')
    A.label('Lm_w2')
    A.reset_queues()
    A(f'''
    s_barrier
    ds_read_b32 v250, v251
    s_waitcnt lgkmcnt(0)
    v_readfirstlane_b32 s93, v250
    s_nop 3
    s_cmp_lg_u32 s93, 255
    s_cbranch_scc1 Lm_try
    s_cmp_eq_u32 s91, 1
    s_cbranch_scc1 Lm_wexit
    s_mov_b32 s96, {rc(12)}
    ''')
    bcast_atomic(A,'add',1,96,92)
    A(f'''
    s_cmp_ge_u32 s92, {NTASK}
    s_cselect_b32 s91, 1, 0
    s_cbranch_scc1 Lm_wloop
    s_mul_hi_u32 s{W.S_RB}, s92, {(1<<32)//39+1}
    s_mul_i32 s93, s{W.S_RB}, 39
    s_sub_u32 s{W.S_ID}, s92, s93
    ''')
    W.load_xf(A)
    A(f's_cmp_ge_u32 s{W.S_ID}, 32')
    A.branch('s_cbranch_scc1 Lm_ffn')
    sv=list(A.vq)
    W.qkv_task(A,' sc1')
    A(f'''
    s_barrier
    s_lshl_b32 s92, s{W.S_RB}, 5
    s_add_u32 s92, s92, s{W.S_ID}
    s_lshl_b32 s92, s92, 2
    s_add_u32 s92, s92, {F1_OFF}
    v_mov_b32 v250, 1
    s_cmp_lg_u32 s3, 0
    s_cbranch_scc1 Lm_wloop
    s_mov_b64 exec, 1
    buffer_atomic_add v250, off, s[{SWS}:{SWS+3}], s92
    s_mov_b64 exec, -1
    s_branch Lm_wloop
    ''')
    A.label('Lm_ffn')
    A.reset_queues(); A.vq=sv
    A(f's_sub_u32 s{W.S_ID}, s{W.S_ID}, 32')
    W.ffn_task(A,' sc1')
    A(f'''
    s_barrier
    s_lshl_b32 s92, s{W.S_RB}, 7
    s_add_u32 s92, s92, {F2_OFF}
    v_mov_b32 v250, 1
    s_cmp_lg_u32 s3, 0
    s_cbranch_scc1 Lm_wloop
    s_mov_b64 exec, 1
    buffer_atomic_add v250, off, s[{SWS}:{SWS+3}], s92
    s_mov_b64 exec, -1
    s_branch Lm_wloop
    ''')
    A.label('Lm_wexit')
    if ts: A('s_mov_b32 s97, 300'); tstamp(A,1,100); tstamp(A,2,100); tstamp(A,0,97)
    A.label('Lm_exit')
    A('s_endpgm')
def gen(path, **kw):
    A=Asm()
    header(A,['; @launch kernel=ln_kernel grid=(256,1,1) block=(256,1,1) lds=0',
              f'; @launch kernel=mega_kernel grid=(256,1,1) block=(256,1,1) lds={LDS}'])
    ln_kernel(A); mega_kernel(A,**kw)
    A.raw('.section .rodata,"a"')
    for k in (kdesc('ln_kernel',64,64),kdesc('mega_kernel')): A.raw(k)
    open(path,'w').write(A.text()); print(A.ninst)
if __name__=='__main__':
    gen('mega.s')
    gen('mega_t1.s', ts=True)
    gen('mega_slow.s', force_slow=True)
    gen('mega_q.s', quota=20)
```
